```python
import torch

def _softmax(x, axis=-1):
    return torch.softmax(x, dim=axis)
def _gelu(x):
    return torch.nn.functional.gelu(x, approximate="tanh")
def _silu(x):
    return torch.nn.functional.silu(x)
def _sigmoid(x):
    return torch.sigmoid(x)
def _layernorm(x, axis=-1, eps=1e-5):
    m = x.mean(dim=axis, keepdim=True)
    v = x.var(dim=axis, keepdim=True, unbiased=False)
    return (x - m) / torch.sqrt(v + eps)
def _scatter_add(tgt, idx, src, axis=0):
    return tgt.clone().index_add_(axis, idx, src)
def _segment_sum(src, seg, n):
    out = torch.zeros((n,) + src.shape[1:], dtype=src.dtype)
    return out.index_add_(0, seg, src)
def _pad(x, pw):
    flat = tuple(v for pair in reversed(pw) for v in pair)
    return torch.nn.functional.pad(x, flat)

kernel_name = 'recurrent_scan__sliding_block_cached__mixer_token_mlp__decode'

def setup_inputs():

    _w = (lambda a: (lambda t: t.to(torch.bfloat16) if t.is_floating_point() else t)(torch.as_tensor(a)))
    def _A_setup():
        B, Sq, D = 4, 1, 576
        Hq, Hkv, Sk, Dh = 32, 16, 8192, 128
        assert Hq % Hkv == 0, (Hq, Hkv)
        return {
            "x": _w((lambda *s: torch.randn(*s, dtype=torch.bfloat16) * 0.05)(B, Sq, D)),
            "k_cache": _w((lambda *s: torch.randn(*s, dtype=torch.bfloat16) * 1.6)(B, Hkv, Sk, Dh)),
            "v_cache": _w((lambda *s: torch.randn(*s, dtype=torch.bfloat16) * 1.6)(B, Hkv, Sk, Dh)),
            "wq": _w((lambda *s: torch.randn(*s, dtype=torch.bfloat16) * 1.6)(D, Hq * Dh) * (D ** -0.5)),
            "wo": _w((lambda *s: torch.randn(*s, dtype=torch.bfloat16) * 1.6)(Hq * Dh, D) * ((Hq * Dh) ** -0.5)),
        }
    _A_in = _A_setup()

    def _B_setup():
        B, S, D, F = 4, 1, 576, 4608
        return {
            "x": _w((lambda *s: torch.randn(*s, dtype=torch.bfloat16) * 0.05)(B, S, D)),
            "w1": _w((lambda *s: torch.randn(*s, dtype=torch.bfloat16) * 0.2)(S, F) * (S ** -0.5)),
            "b1": _w((lambda *s: torch.randn(*s, dtype=torch.bfloat16) * 0.2)(F) * 0.02),
            "w2": _w((lambda *s: torch.randn(*s, dtype=torch.bfloat16) * 0.2)(F, S) * (F ** -0.5)),
            "b2": _w((lambda *s: torch.randn(*s, dtype=torch.bfloat16) * 0.2)(S) * 0.02),
        }
    _B_in = _B_setup()

    return {
        "A_x": _A_in["x"],
        "A_k_cache": _A_in["k_cache"],
        "A_v_cache": _A_in["v_cache"],
        "A_wq": _A_in["wq"],
        "A_wo": _A_in["wo"],
        "B_x": _B_in["x"],
        "B_w1": _B_in["w1"],
        "B_b1": _B_in["b1"],
        "B_w2": _B_in["w2"],
        "B_b2": _B_in["b2"],
    }

def reference(A_x, A_k_cache, A_v_cache, A_wq, A_wo, B_x, B_w1, B_b1, B_w2, B_b2):
    def _A_ref(x, k_cache, v_cache, wq, wo):
        B, Sq, D = x.shape
        Hq, Dh = 32, 128
        Hkv, Sk = k_cache.shape[1], k_cache.shape[2]
        W = min(4096, max(256, Sk // 4))
        rep = Hq // Hkv
        q = (lambda x, *d: x.permute(*d))((x @ wq).reshape(B, Sq, Hq, Dh), 0, 2, 1, 3)
        k = (lambda x, n, axis: torch.repeat_interleave(x, n, dim=axis))(k_cache[:, :, Sk - W:, :], rep, axis=1)
        v = (lambda x, n, axis: torch.repeat_interleave(x, n, dim=axis))(v_cache[:, :, Sk - W:, :], rep, axis=1)
        scores = torch.einsum("bhqd,bhkd->bhqk", q, k) * (Dh ** -0.5)
        p = _softmax(scores, axis=-1)
        o = torch.einsum("bhqk,bhkd->bhqd", p, v)
        return (lambda x, *d: x.permute(*d))(o, 0, 2, 1, 3).reshape(B, Sq, Hq * Dh) @ wo

    def _B_ref(x, w1, b1, w2, b2):
        B, S, D = x.shape
        h = _layernorm(x, axis=-1)
        u = torch.einsum("bsd,sf->bdf", h, w1) + b1
        u = _gelu(u)
        y = torch.einsum("bdf,fs->bds", u, w2) + b2
        return (lambda x, *d: x.permute(*d))(y, 0, 2, 1)

    x = A_x
    xn = _layernorm(x, axis=-1)
    s = _A_ref(xn, A_k_cache, A_v_cache, A_wq, A_wo)
    g = _silu(_B_ref(xn, B_w1, B_b1, B_w2, B_b2))
    return x + s * g
```

```python
import sys
NAME = "recurrent_scan__sliding_block_cached__mixer_token_mlp__decode_kernel"

KBUF = 0
WQ   = 131072
PB   = WQ
OPART = WQ + 4096
XN   = WQ + 18432
HB   = XN + 4608
QS   = HB + 2304
GP   = QS + 512
INIT = GP + 1024
F_X, F_Q, F_K, F_M, F_P, F_VI, F_WO, F_O, F_OB, F_G, F_T, F_OP, F_PJ, F_WQ, F_QP = [INIT + 4 * i for i in range(15)]
TAG  = INIT + 64
LSUM = INIT + 80
MA   = INIT + 96
LA   = INIT + 384
ZERO = INIT + 128
OB   = INIT + 256
OACC = INIT + 1024
LDS_BYTES = INIT + 2048
assert LDS_BYTES <= 163840, LDS_BYTES
WO_PITCH = 1056
WO_LEFT = 64 * WO_PITCH
W_EPOCH = 0
W_Q  = 0x1000
W_ML = 0x90000
W_O  = 0xA0000
W_S  = 0x140000
W_END = W_S + 144 * 8192
STAMP_OFF = 0x10000000

class G:
    def __init__(self, stamps=False, depth=4, opts=None):
        self.L = []
        self.stamps = stamps
        self.depth = depth
        self.o = opts or {}
        self.uid = 0
    def A(self, s):
        for line in s.strip("\n").split("\n"):
            self.L.append("  " + line.strip() if not line.strip().endswith(":") else line.strip())
    def lab(self, p="L"):
        self.uid += 1
        return f"{p}_{self.uid}"
    def stamp(self, i):
        if self.stamps:
            self.A(f"s_memrealtime s[{64+2*i}:{65+2*i}]\ns_waitcnt lgkmcnt(0)")
    def lds_wait(self, addr, val, vt, sleep=0):
        l = self.lab("LW")
        self.A(f"""
        v_mov_b32 v{vt}, {addr}
        {l}:
        ds_read_b32 v{vt+1}, v{vt}
        s_add_u32 s62, s62, 1
        s_cmp_gt_u32 s62, 0x400000
        s_cbranch_scc1 L_end
        """)
        sleep = max(sleep, int(self.o.get('minsleep', 0)))
        if sleep: self.A(f"s_sleep {sleep}")
        self.A(f"""
        s_waitcnt lgkmcnt(0)
        v_readfirstlane_b32 s46, v{vt+1}
        s_nop 0
        s_cmp_lt_u32 s46, {val}
        s_cbranch_scc1 {l}
        """)
    def lds_signal(self, addr, vt, rtn=False):
        self.A(f"""
        v_mov_b32 v{vt}, {addr}
        v_mov_b32 v{vt+1}, 1
        s_mov_b64 exec, 1
        """)
        if rtn:
            self.A(f"ds_add_rtn_u32 v{vt+1}, v{vt}, v{vt+1}")
        else:
            self.A(f"ds_add_u32 v{vt}, v{vt+1}")
        self.A("s_mov_b64 exec, -1")
    def wave_sum(self, v, s, op="add"):
        ins = f"v_{op}_f32_dpp v{v}, v{v}, v{v}"
        self.A(f"""
        s_nop 1
        {ins} quad_perm:[1,0,3,2] row_mask:0xf bank_mask:0xf
        s_nop 1
        {ins} quad_perm:[2,3,0,1] row_mask:0xf bank_mask:0xf
        s_nop 1
        {ins} row_half_mirror row_mask:0xf bank_mask:0xf
        s_nop 1
        {ins} row_mirror row_mask:0xf bank_mask:0xf
        s_nop 1
        {ins} row_bcast:15 row_mask:0xa bank_mask:0xf
        s_nop 1
        {ins} row_bcast:31 row_mask:0xc bank_mask:0xf
        s_nop 0
        v_readlane_b32 s{s}, v{v}, 63
        s_nop 1
        """)
    def rb(self, v):
        self.A(f"v_cvt_pk_bf16_f32 v{v}, v{v}, v{v}\nv_and_b32 v{v}, 0xffff0000, v{v}")
    def rb2(self, a, b):
        self.A(f"""
        v_cvt_pk_bf16_f32 v{b}, v{a}, v{b}
        v_lshlrev_b32 v{a}, 16, v{b}
        v_and_b32 v{b}, 0xffff0000, v{b}
        """)
    def read_tag(self, vt):
        self.A(f"""
        v_mov_b32 v{vt}, {TAG}
        ds_read_b64 v[{vt}:{vt+1}], v{vt}
        s_waitcnt lgkmcnt(0)
        v_readfirstlane_b32 s60, v{vt}
        v_readfirstlane_b32 s61, v{vt+1}
        s_nop 1
        """)

    def gen(self):
        A = self.A
        D = self.depth
        hdr = open("recurrent_scan__sliding_block_cached__mixer_token_mlp__decode.s.ref").read().split("\n")
        for line in hdr:
            if line.startswith("; @launch"):
                self.L.append(f"; @launch grid=(256,1,1) block=(1024,1,1) lds={LDS_BYTES}")
                break
            self.L.append(line)
        self.L += ['.amdgcn_target "amdgcn-amd-amdhsa--gfx950"', ".text", f".globl {NAME}", ".p2align 8",
                   f".type {NAME},@function", f"{NAME}:"]
        if self.stamps:
            A("s_memrealtime s[64:65]")
            for i in range(66, 96): A(f"s_mov_b32 s{i}, 0")
        A(f"""
        s_cmp_ge_u32 s2, 256
        s_cbranch_scc1 L_exit
        s_load_dwordx16 s[4:19], s[0:1], 0
        s_load_dwordx8 s[20:27], s[0:1], 64
        s_load_dwordx2 s[28:29], s[0:1], 96
        v_lshrrev_b32 v1, 6, v0
        v_and_b32 v0, 63, v0
        v_readfirstlane_b32 s3, v1
        s_and_b32 s30, s2, 15
        s_lshr_b32 s31, s2, 4
        s_lshr_b32 s32, s31, 2
        s_and_b32 s33, s31, 3
        s_mov_b32 s62, 0
        s_mov_b32 s39, 0x20000
        s_mov_b32 s43, 0x20000
        s_cmp_lg_u32 s3, 0
        s_cbranch_scc1 L_noinit
        v_lshlrev_b32 v1, 4, v0
        v_mov_b32 v4, 0
        v_mov_b32 v5, 0
        v_mov_b32 v6, 0
        v_mov_b32 v7, 0
        """)
        A(f"""
        v_add_u32 v1, {INIT}, v1
        ds_write_b128 v1, v[4:7]
        ds_write_b128 v1, v[4:7] offset:1024
        s_waitcnt lgkmcnt(0)
        L_noinit:
        s_barrier
        s_waitcnt lgkmcnt(0)
        {('s_add_u32 s28, s28, %s' % self.o['wsoff']) if self.o.get('wsoff') else ''}
        {'s_addc_u32 s29, s29, 0' if self.o.get('wsoff') else ''}
        s_cmp_lt_u32 s3, 4
        s_cbranch_scc0 L_nox
        s_mul_i32 s44, s3, 1152
        s_add_u32 s36, s4, s44
        s_addc_u32 s37, s5, 0
        s_movk_i32 s38, 1152
        v_lshlrev_b32 v1, 4, v0
        v_lshlrev_b32 v14, 1, v0
        buffer_load_dwordx4 v[16:19], v1, s[36:39], 0 offen SMALLPOL
        buffer_load_ushort v20, v14, s[36:39], 0 offen offset:1024 SMALLPOL
        s_load_dwordx2 s[60:61], s[28:29], {W_EPOCH}
        L_nox:
        s_lshr_b32 s46, s2, 3
        v_lshlrev_b32 v2, 4, v0
        s_cmp_lg_u32 s3, 7
        s_cbranch_scc1 L_nowarmc
        s_cmp_lt_u32 s46, (L_code_end-{NAME})>>10
        s_cbranch_scc0 L_nowarmc
        s_getpc_b64 s[44:45]
        L_pc:
        s_sub_u32 s44, s44, L_pc-{NAME}
        s_subb_u32 s45, s45, 0
        s_lshl_b32 s46, s46, 10
        v_add_u32 v2, s46, v2
        global_load_dwordx4 v[60:63], v2, s[44:45]
        L_nowarmc:
        s_cmp_lg_u32 s3, 6
        s_cbranch_scc1 L_nowarmw
        s_cmp_lt_u32 s46, 27
        s_cbranch_scc0 L_nowarmw
        s_mov_b64 s[44:45], s[16:17]
        s_cmp_lt_u32 s46, 9
        s_cbranch_scc1 L_warmw
        s_mov_b64 s[44:45], s[18:19]
        s_sub_u32 s46, s46, 9
        s_cmp_lt_u32 s46, 9
        s_cbranch_scc1 L_warmw
        s_mov_b64 s[44:45], s[20:21]
        s_sub_u32 s46, s46, 9
        L_warmw:
        s_lshl_b32 s46, s46, 10
        v_add_u32 v2, s46, v2
        global_load_dwordx4 v[60:63], v2, s[44:45] SMALLPOL
        L_nowarmw:
        s_cmp_lt_u32 s3, 8
        s_cbranch_scc1 L_service
        """)
        self.gen_S()
        A("L_service:")
        if self.o.get('sonly'): A("s_branch L_end")
        A(f"""
        s_cmp_lt_u32 s3, 4
        s_cbranch_scc0 L_M
        s_setprio {self.o.get('prioA','3')}
        """)
        self.gen_A()
        self.gen_LN()
        self.gen_M()
        A("L_end:")
        if self.stamps:
            A(f"""
            s_mov_b64 exec, -1
            s_waitcnt lgkmcnt(0)
            s_memrealtime s[94:95]
            s_lshl_b32 s44, s2, 4
            s_add_u32 s44, s44, s3
            s_lshl_b32 s44, s44, 7
            s_add_u32 s44, s44, {STAMP_OFF}
            s_add_u32 s28, s28, s44
            s_addc_u32 s29, s29, 0
            v_mov_b32 v4, 0
            s_waitcnt lgkmcnt(0)
            """)
            for i in range(32):
                A(f"v_writelane_b32 v6, s{64+i}, {i}")
            A("""
            v_lshlrev_b32 v4, 2, v0
            s_mov_b32 exec_hi, 0
            global_store_dword v4, v6, s[28:29]
            """)
        A("L_exit:")
        A("s_endpgm")
        A("L_code_end:")
        self.L += ['.section .rodata,"a"', ".p2align 6", f".amdhsa_kernel {NAME}",
                   "  .amdhsa_next_free_vgpr 128", "  .amdhsa_next_free_sgpr 96", "  .amdhsa_accum_offset 128",
                   "  .amdhsa_group_segment_fixed_size 0", "  .amdhsa_kernarg_size 104", "  .amdhsa_user_sgpr_count 2",
                   "  .amdhsa_user_sgpr_kernarg_segment_ptr 1", "  .amdhsa_system_sgpr_workgroup_id_x 1",
                   ".end_amdhsa_kernel"]
        out = []
        for line in self.L:
            if line.rstrip().endswith(" sc1"):
                pol = self.o.get("ldpol", "sc1") if "global_load" in line else self.o.get("stpol", "sc1")
                line = line.rstrip()[:-3] + pol.replace("_", " ")
            line = line.replace("SMALLPOL", self.o.get("smallpol", ""))
            if self.o.get("kvpol") == "def" and "offen nt" in line: line = line.replace("offen nt", "offen")
            out.append(line)
        return "\n".join(out) + "\n"

    def gen_S(self):
        A = self.A
        D = self.depth
        A(f"""
        s_setprio {self.o.get('prioS','2')}
        s_sub_u32 s34, s3, 8
        s_mul_i32 s44, s32, {144*8192}
        s_lshl_b32 s45, s30, 9
        s_add_u32 s44, s44, s45
        s_lshl_b32 s45, s33, 7
        s_add_u32 s44, s44, s45
        s_add_u32 s40, s10, s44
        s_addc_u32 s41, s11, 0
        s_mov_b32 s42, {143*8192+128}
        v_lshrrev_b32 v2, 3, v0
        v_bfe_u32 v3, v0, 4, 2
        v_lshlrev_b32 v3, 1, v3
        v_and_b32 v4, 7, v0
        v_xor_b32 v3, v3, v4
        v_lshlrev_b32 v3, 4, v3
        v_lshl_add_u32 v2, v2, 13, v3
        s_lshl_b32 s44, s34, 10
        s_add_u32 m0, s44, {WQ}
        s_lshl_b32 s44, s34, 16
        {'s_branch L_wqdone' if self.o.get('nowq') else ''}
        L_wqloop:
        buffer_load_dwordx4 v2, s[40:43], s44 offen nt lds
        s_add_u32 m0, m0, 0x2000
        s_add_u32 s44, s44, 0x80000
        s_cmp_lt_u32 s44, {18*65536}
        s_cbranch_scc1 L_wqloop
        L_wqdone:
        s_lshl_b32 s44, s32, 4
        s_add_u32 s44, s44, s30
        s_lshl_b32 s44, s44, 21
        s_lshl_b32 s45, s33, 17
        s_add_u32 s44, s44, s45
        s_add_u32 s44, s44, {6144*256}
        s_add_u32 s36, s6, s44
        s_addc_u32 s37, s7, 0
        s_mov_b32 s38, 0x20000
        s_lshl_b32 s45, s34, 14
        s_add_u32 s44, s44, s45
        s_add_u32 s40, s8, s44
        s_addc_u32 s41, s9, 0
        s_movk_i32 s42, 0x4000
        s_mul_i32 s51, s2, 5
        s_add_u32 s51, s51, s31
        v_lshrrev_b32 v2, 4, v0
        v_lshlrev_b32 v1, 4, v0
        v_lshlrev_b32 v3, 6, v2
        v_xor_b32 v3, v1, v3
        v_mov_b32 v5, {F_T}
        v_mov_b32 v6, 1
        s_mov_b32 s50, s34
        """)
        self.stamp(1)
        A(f"""
        L_kloop:
        s_and_b32 s44, s50, 7
        s_lshr_b32 s45, s50, 3
        s_mul_i32 s46, s44, 3
        s_add_u32 s46, s46, s51
        s_add_u32 s46, s46, s45
        s_and_b32 s46, s46, 15
        s_lshl_b32 s44, s44, 4
        s_add_u32 s46, s46, s44
        s_lshl_b32 s46, s46, 10
        s_add_u32 s44, s44, s45
        s_lshl_b32 m0, s44, 10
        s_and_b32 s47, s45, 3
        s_lshl_b32 s47, s47, 4
        v_xor_b32 v4, s47, v3
        s_waitcnt vmcnt({D-1})
        buffer_load_dwordx4 v4, s[36:39], s46 offen nt lds
        s_cmp_lt_u32 s50, {8*(D-2)}
        s_cbranch_scc0 L_kdyn
        s_add_u32 s50, s50, 8
        s_branch L_kloop
        L_kdyn:
        s_cmp_lt_u32 s50, {8*(D-1)}
        s_cbranch_scc0 L_kdyn2
        s_add_u32 s50, s50, 8
        s_mov_b64 exec, 1
        ds_add_rtn_u32 v7, v5, v6
        s_mov_b64 exec, -1
        s_branch L_kloop
        L_kdyn2:
        s_waitcnt lgkmcnt(0)
        v_readfirstlane_b32 s49, v7
        s_mov_b64 exec, 1
        ds_add_rtn_u32 v7, v5, v6
        s_cmp_lt_u32 s50, {8*D}
        s_cbranch_scc0 L_knosig
        ds_add_u32 v5, v6 offset:{(F_WQ-F_T) & 0xffff}
        L_knosig:
        s_mov_b64 exec, -1
        s_add_u32 s50, s49, {8*D}
        s_cmp_lt_u32 s50, 128
        s_cbranch_scc1 L_kloop
        s_mul_i32 s46, s34, 3
        s_add_u32 s46, s46, s51
        s_and_b32 s46, s46, 15
        s_lshl_b32 s46, s46, 10
        s_movk_i32 s48, 0x400
        s_movk_i32 s49, 0x3fff
        s_waitcnt lgkmcnt(0)
        """)
        self.stamp(2)
        VB = 64
        DV = int(self.o.get("depthv", D))
        for n in range(16):
            if n <= D - 1 or n < int(self.o.get("vpaced", 16)):
                A(f"s_waitcnt vmcnt({(D if n <= D - 1 else DV)-1})")
            if n == D - 1:
                self.lds_signal(F_K, 4)
            A(f"""
            buffer_load_dwordx4 v[{VB+4*n}:{VB+4*n+3}], v1, s[40:43], s46 offen nt
            s_add_u32 s46, s46, s48
            s_and_b32 s46, s46, s49
            """)
        self.lds_signal(F_VI, 4)
        self.stamp(3)
        A(f"""
        v_and_b32 v4, 1, v0
        v_cmp_eq_u32 vcc, 1, v4
        v_mov_b32 v5, 0xffff
        v_mov_b32 v6, 0xffff0000
        v_bfe_u32 v4, v0, 1, 2
        v_cndmask_b32 v5, v5, v6, vcc
        """)
        for i in range(4):
            A(f"""
            v_cmp_eq_u32 vcc, {i}, v4
            s_nop 1
            v_cndmask_b32 v{8+i}, 0, v5, vcc
            """)
        A(f"""
        v_bfe_u32 v4, v0, 3, 1
        v_lshlrev_b32 v4, 11, v4
        v_lshl_add_u32 v4, v2, 6, v4
        s_lshl_b32 s44, s34, 8
        s_add_u32 s44, s44, {PB}
        v_add_u32 v12, s44, v4
        v_mov_b32 v32, 0
        v_mov_b32 v33, 0
        v_mov_b32 v34, 0
        v_mov_b32 v35, 0
        """)
        A(f"""
        v_lshrrev_b32 v4, 5, v0
        v_bfe_u32 v5, v0, 3, 1
        v_lshl_add_u32 v4, v4, 1, v5
        v_lshlrev_b32 v4, 11, v4
        v_and_b32 v5, 7, v0
        v_lshl_add_u32 v4, v5, 6, v4
        v_bfe_u32 v5, v0, 4, 1
        v_lshl_add_u32 v4, v5, 5, v4
        s_lshl_b32 s44, s32, 4
        s_add_u32 s44, s44, s30
        s_lshl_b32 s44, s44, 13
        s_lshl_b32 s45, s33, 9
        s_add_u32 s44, s44, s45
        s_add_u32 s44, s44, {W_O}
        v_add_u32 v13, s44, v4
        v_lshlrev_b32 v14, 4, v0
        v_add_u32 v14, {OPART}, v14
        s_lshl_b32 s44, s34, 10
        v_add_u32 v15, s44, v14
        """)
        self.proj_setup(wexpr="s34", wadd=4)
        if not self.o.get('sonly'): self.lds_wait(F_P, 4, 4, sleep=1)
        self.stamp(4)
        A(f"""
        ds_read_b128 v[16:19], v12
        ds_read_b128 v[20:23], v12 offset:16
        ds_read_b128 v[24:27], v12 offset:32
        ds_read_b128 v[28:31], v12 offset:48
        """)
        self.read_tag(4)
        A("""
        v_mov_b32 v41, s60
        v_mov_b32 v43, s61
        v_mov_b32 v45, s60
        v_mov_b32 v47, s61
        """)
        for n in range(16):
            a = 36 if n % 2 == 0 else 4
            A(f"""
            v_and_b32 v{a}, v{16+n}, v8
            v_and_b32 v{a+1}, v{16+n}, v9
            v_and_b32 v{a+2}, v{16+n}, v10
            v_and_b32 v{a+3}, v{16+n}, v11
            s_waitcnt vmcnt({15-n})
            s_nop 0
            v_mfma_f32_16x16x32_bf16 v[32:35], v[{a}:{a+3}], v[{VB+4*n}:{VB+4*n+3}], v[32:35]
            """)
        self.stamp(9)
        A(f"""
        v_mov_b32 v4, {F_O}
        v_mov_b32 v5, 1
        s_nop 5
        ds_write_b128 v15, v[32:35]
        s_mov_b64 exec, 1
        ds_add_rtn_u32 v5, v4, v5
        s_mov_b64 exec, -1
        s_waitcnt lgkmcnt(0)
        v_readfirstlane_b32 s46, v5
        s_nop 0
        s_cmp_lg_u32 s46, 7
        s_cbranch_scc1 L_S_notlast
        ds_read_b128 v[64:67], v14 offset:0
        ds_read_b128 v[68:71], v14 offset:1024
        ds_read_b128 v[72:75], v14 offset:2048
        ds_read_b128 v[76:79], v14 offset:3072
        ds_read_b128 v[80:83], v14 offset:4096
        ds_read_b128 v[84:87], v14 offset:5120
        ds_read_b128 v[88:91], v14 offset:6144
        ds_read_b128 v[92:95], v14 offset:7168
        s_waitcnt lgkmcnt(6)
        v_pk_add_f32 v[64:65], v[64:65], v[68:69]
        v_pk_add_f32 v[66:67], v[66:67], v[70:71]
        s_waitcnt lgkmcnt(4)
        v_pk_add_f32 v[72:73], v[72:73], v[76:77]
        v_pk_add_f32 v[74:75], v[74:75], v[78:79]
        v_pk_add_f32 v[64:65], v[64:65], v[72:73]
        v_pk_add_f32 v[66:67], v[66:67], v[74:75]
        s_waitcnt lgkmcnt(2)
        v_pk_add_f32 v[80:81], v[80:81], v[84:85]
        v_pk_add_f32 v[82:83], v[82:83], v[86:87]
        s_waitcnt lgkmcnt(0)
        v_pk_add_f32 v[88:89], v[88:89], v[92:93]
        v_pk_add_f32 v[90:91], v[90:91], v[94:95]
        v_pk_add_f32 v[80:81], v[80:81], v[88:89]
        v_pk_add_f32 v[82:83], v[82:83], v[90:91]
        v_add_f32 v40, v64, v80
        v_add_f32 v42, v65, v81
        v_add_f32 v44, v66, v82
        v_add_f32 v46, v67, v83
        global_store_dwordx4 v13, v[40:43], s[28:29] sc1
        global_store_dwordx4 v13, v[44:47], s[28:29] offset:16 sc1
        s_mov_b64 exec, 1
        ds_write_b32 v4, v5 offset:{F_OP-F_O}
        s_mov_b64 exec, -1
        L_S_notlast:
        """)
        self.stamp(5)
        A("s_branch L_proj")

    def proj_setup(self, wexpr, wadd):
        A = self.A
        A(f"""
        s_add_u32 s56, {wexpr}, {wadd}
        s_mul_i32 s56, s56, 3
        v_lshrrev_b32 v4, 4, v0
        v_bfe_u32 v5, v0, 2, 2
        v_lshlrev_b32 v6, 4, v4
        v_add_u32 v7, {OB}, v6
        v_add_u32 v6, {ZERO}, v6
        """)
        for d in range(3):
            A(f"""
            v_cmp_eq_u32 vcc, {d}, v5
            s_nop 1
            v_cndmask_b32 v{48+d}, v6, v7, vcc
            """)
        A(f"""
        v_lshl_add_u32 v6, v4, 2, v5
        v_and_b32 v7, 3, v0
        v_lshlrev_b32 v7, 3, v7
        v_mul_u32_u24 v55, {WO_PITCH}, v6
        v_add_u32 v55, v55, v7
        v_lshl_add_u32 v56, v6, 7, v7
        v_add_u32 v56, {WO_LEFT}, v56
        v_bfe_u32 v6, v6, 1, 2
        v_lshl_add_u32 v56, v6, 5, v56
        """)
        for d in range(3):
            A(f"""
            s_add_u32 s44, s56, {d}
            s_lshl_b32 s45, s44, 5
            v_add_u32 v6, s45, v55
            s_and_b32 s45, s45, 0x60
            v_xor_b32 v7, s45, v56
            s_cmp_lt_u32 s44, 32
            s_cselect_b64 vcc, -1, 0
            s_movk_i32 s{57+d}, {16*128}
            s_cmov_b32 s{57+d}, {16*WO_PITCH}
            v_cndmask_b32 v{51+d}, v7, v6, vcc
            """)
        A(f"""
        s_mul_i32 s44, s32, 36
        s_add_u32 s44, s44, s56
        s_lshl_b32 s44, s44, 13
        s_lshl_b32 s45, s30, 2
        s_add_u32 s45, s45, s33
        s_lshl_b32 s45, s45, 7
        s_add_u32 s44, s44, s45
        s_add_u32 s44, s44, {W_S}
        v_lshlrev_b32 v6, 13, v5
        v_lshl_add_u32 v6, v4, 5, v6
        v_and_b32 v7, 1, v0
        v_lshl_add_u32 v6, v7, 4, v6
        v_add_u32 v54, s44, v6
        v_cmp_eq_u32 s[54:55], 1, v7
        v_and_b32 v6, 14, v0
        v_cmp_gt_u32 s[52:53], 12, v6
        v_and_b32 v6, 2, v0
        v_cmp_eq_u32 vcc, 0, v6
        s_and_b64 s[52:53], s[52:53], vcc
        """)

    def gen_proj(self):
        A = self.A
        A("L_proj:")
        if self.o.get('notail'): A("s_branch L_end")
        self.lds_wait(F_WO, 4, 4)
        self.stamp(6)
        for d in range(3):
            A(f"v_mov_b32 v4, v{51+d}")
            for k in range(2):
                r = 64 + (d * 2 + k) * 4
                A(f"""
                ds_read_b64_tr_b16 v[{r}:{r+1}], v4
                v_add_u32 v4, s{57+d}, v4
                ds_read_b64_tr_b16 v[{r+2}:{r+3}], v4
                """)
                if k == 0: A(f"v_add_u32 v4, s{57+d}, v4")
        A("""
        v_mov_b32 v32, 0
        v_mov_b32 v33, 0
        v_mov_b32 v34, 0
        v_mov_b32 v35, 0
        v_mov_b32 v41, s60
        v_mov_b32 v43, s61
        """)
        self.lds_wait(F_OB, 1, 4)
        self.stamp(7)
        for d in range(3):
            for k in range(2):
                r = 96 + (d * 2 + k) * 4
                A(f"ds_read_b128 v[{r}:{r+3}], v{48+d} offset:{64*k}")
        for i in range(6):
            A(f"""
            s_waitcnt lgkmcnt({5-i})
            v_mfma_f32_16x16x32_bf16 v[32:35], v[{64+4*i}:{67+4*i}], v[{96+4*i}:{99+4*i}], v[32:35]
            """)
        A("""
        s_nop 7
        v_cndmask_b32 v40, v32, v34, s[54:55]
        v_cndmask_b32 v42, v33, v35, s[54:55]
        s_mov_b64 exec, s[52:53]
        global_store_dwordx4 v54, v[40:43], s[28:29] sc1
        s_mov_b64 exec, -1
        """)
        self.lds_signal(F_PJ, 4)
        self.stamp(8)
        A("s_branch L_end")

    def gen_LN(self):
        A = self.A
        A("L_ln:")
        A("""
        v_add_f32 v11, v2, v3
        v_add_f32 v12, v4, v5
        v_add_f32 v13, v6, v7
        v_add_f32 v11, v11, v12
        v_add_f32 v12, v8, v9
        v_add_f32 v13, v13, v10
        v_add_f32 v11, v11, v12
        v_add_f32 v11, v11, v13
        """)
        self.wave_sum(11, 44)
        A("""
        v_mov_b32 v11, 0x3ae38e39
        v_mul_f32 v11, s44, v11
        v_mov_b32 v12, 0
        """)
        for i in range(2, 11):
            A(f"v_sub_f32 v13, v{i}, v11\nv_fmac_f32 v12, v13, v13")
        self.wave_sum(12, 45)
        self.rb(11)
        A("""
        v_mov_b32 v12, 0x3ae38e39
        v_mul_f32 v12, s45, v12
        """)
        self.rb(12)
        A("v_add_f32 v12, 0x3727c5ac, v12")
        self.rb(12)
        A("v_sqrt_f32 v12, v12\ns_nop 0")
        self.rb(12)
        A("v_rcp_f32 v12, v12")
        for i in range(2, 11): A(f"v_sub_f32 v{i}, v{i}, v11")
        for i in range(2, 10, 2): self.rb2(i, i + 1)
        self.rb(10)
        for i in range(2, 11): A(f"v_mul_f32 v{i}, v{i}, v12")
        for i in range(2, 10, 2): self.rb2(i, i + 1)
        self.rb(10)
        A("s_setpc_b64 s[50:51]")

    def unpack9(self, src, s9):
        A = self.A
        for i in range(4):
            A(f"v_lshlrev_b32 v{2+2*i}, 16, v{src+i}\nv_and_b32 v{3+2*i}, 0xffff0000, v{src+i}")
        A(f"v_lshlrev_b32 v10, 16, v{s9}")

    def gen_A(self):
        A = self.A
        A("s_waitcnt vmcnt(0)")
        self.stamp(1)
        self.unpack9(16, 20)
        A("s_call_b64 s[50:51], L_ln")
        A(f"""
        v_cvt_pk_bf16_f32 v16, v2, v3
        v_cvt_pk_bf16_f32 v17, v4, v5
        v_cvt_pk_bf16_f32 v18, v6, v7
        v_cvt_pk_bf16_f32 v19, v8, v9
        v_lshrrev_b32 v20, 16, v10
        s_mul_i32 s44, s3, 1152
        s_add_u32 s44, s44, {XN}
        v_add_u32 v11, s44, v1
        v_add_u32 v12, s44, v14
        ds_write_b128 v11, v[16:19]
        ds_write_b16 v12, v20 offset:1024
        s_waitcnt lgkmcnt(0)
        s_add_u32 s60, s60, 0x7f4a7c15
        s_addc_u32 s61, s61, 0x9e3779b9
        s_cmp_lg_u32 s3, 0
        s_cbranch_scc1 L_A_notag
        v_mov_b32 v11, {TAG}
        v_mov_b32 v12, s60
        v_mov_b32 v13, s61
        ds_write_b64 v11, v[12:13]
        L_A_notag:
        """)
        self.lds_signal(F_X, 4)
        self.stamp(2)
        A("""
        s_cmp_lg_u32 s3, 0
        s_cbranch_scc1 L_A_poll
        """)
        self.lds_wait(F_X, 4, 4)
        A(f"""
        v_lshrrev_b32 v2, 4, v0
        v_bfe_u32 v3, v0, 2, 2
        v_lshl_add_u32 v4, v2, 2, v3
        v_bfe_u32 v5, v4, 1, 2
        v_lshlrev_b32 v5, 5, v5
        v_lshl_add_u32 v5, v4, 7, v5
        v_and_b32 v6, 3, v0
        v_lshl_add_u32 v5, v6, 3, v5
        v_add_u32 v8, {WQ}, v5
        v_xor_b32 v9, 32, v8
        v_xor_b32 v10, 64, v8
        v_xor_b32 v11, 0x60, v8
        v_mul_u32_u24 v12, 1152, v6
        v_lshl_add_u32 v12, v2, 3, v12
        s_mul_i32 s44, s32, 288
        s_add_u32 s44, s44, {XN}
        v_add_u32 v12, s44, v12
        """)
        for k in range(4):
            A(f"ds_read2_b64 v[{16+4*k}:{19+4*k}], v12 offset0:{8*k} offset1:{8*k+4}")
        A("ds_read_b64 v[32:33], v12 offset:256")
        for i in range(36, 52): A(f"v_mov_b32 v{i}, 0")
        A(f"""
        v_cmp_eq_u32 s[52:53], 1, v3
        v_cmp_eq_u32 s[54:55], 2, v3
        v_cmp_eq_u32 s[56:57], 3, v3
        s_lshl_b32 s44, s30, 15
        s_lshl_b32 s45, s32, 11
        s_add_u32 s44, s44, s45
        s_lshl_b32 s45, s33, 9
        s_add_u32 s44, s44, s45
        s_add_u32 s44, s44, {W_Q}
        v_lshlrev_b32 v13, 13, v6
        v_lshl_add_u32 v13, v3, 7, v13
        v_lshl_add_u32 v13, v2, 5, v13
        v_add_u32 v13, s44, v13
        v_mov_b32 v5, s60
        v_mov_b32 v7, s61
        v_mov_b32 v53, s60
        v_mov_b32 v55, s61
        """)
        self.lds_wait(F_WQ, 8, 14)
        self.stamp(3)
        reads = []
        for ct in range(4):
            base = 56 + 18 * ct
            for k in range(4):
                reads.append(f"ds_read_b64_tr_b16 v[{base+4*k}:{base+4*k+1}], v{8+ct} offset:{4096*k}")
                reads.append(f"ds_read_b64_tr_b16 v[{base+4*k+2}:{base+4*k+3}], v{8+ct} offset:{4096*k+2048}")
            reads.append(f"ds_read_b64_tr_b16 v[{base+16}:{base+17}], v{8+ct} offset:16384")
        A("s_waitcnt lgkmcnt(0)")
        pos = 0
        for ct in range(3):
            upto = 9 * (ct + 1) + 5
            while pos < upto: A(reads[pos]); pos += 1
            self._qmf(ct, 5)
        while pos < 36: A(reads[pos]); pos += 1
        self._qmf(3, 0)
        A("""
        s_nop 7
        """)
        for i, dst in enumerate([4, 6, 52, 54]):
            A(f"""
            v_cndmask_b32 v{dst}, v{36+i}, v{40+i}, s[52:53]
            v_cndmask_b32 v{dst}, v{dst}, v{44+i}, s[54:55]
            v_cndmask_b32 v{dst}, v{dst}, v{48+i}, s[56:57]
            """)
        A("""
        global_store_dwordx4 v13, v[4:7], s[28:29] sc1
        global_store_dwordx4 v13, v[52:55], s[28:29] offset:16 sc1
        """)
        self.stamp(4)
        self.lds_signal(F_QP, 8)
        A("L_A_poll:")
        self.lds_wait(F_QP, 1, 8, sleep=2)
        A(f"""
        s_lshl_b32 s44, s30, 15
        s_lshl_b32 s45, s32, 13
        s_add_u32 s44, s44, s45
        s_lshl_b32 s45, s3, 9
        s_add_u32 s44, s44, s45
        s_add_u32 s44, s44, {W_Q}
        v_lshrrev_b32 v2, 5, v0
        v_and_b32 v3, 31, v0
        v_lshlrev_b32 v4, 12, v2
        v_lshl_add_u32 v4, v3, 4, v4
        v_add_u32 v4, s44, v4
        s_lshl_b32 s44, s3, 7
        s_add_u32 s44, s44, {QS}
        v_lshlrev_b32 v5, 2, v3
        v_lshl_add_u32 v5, v2, 1, v5
        v_add_u32 v5, s44, v5
        s_lshl_b32 s44, s30, 15
        s_lshl_b32 s45, s32, 13
        s_add_u32 s44, s44, s45
        s_lshl_b32 s45, s3, 9
        s_add_u32 s44, s44, s45
        s_add_u32 s44, s44, {W_Q}
        s_add_u32 s48, s28, s44
        s_addc_u32 s49, s29, 0
        {'s_branch L_qskip' if self.o.get('noq') else ''}
        L_qsp:
        s_load_dwordx2 s[52:53], s[48:49], 0x1f8 glc
        s_load_dwordx2 s[54:55], s[48:49], 0x9f8 glc
        s_load_dwordx2 s[56:57], s[48:49], 0x11f8 glc
        s_load_dwordx2 s[58:59], s[48:49], 0x19f8 glc
        s_add_u32 s62, s62, 16
        s_cmp_gt_u32 s62, 0x400000
        s_cbranch_scc1 L_end
        s_sleep {self.o.get('qsleep','0')}
        s_waitcnt lgkmcnt(0)
        s_xor_b32 s53, s53, s61
        s_xor_b32 s55, s55, s61
        s_xor_b32 s57, s57, s61
        s_xor_b32 s59, s59, s61
        s_or_b32 s53, s53, s55
        s_or_b32 s57, s57, s59
        s_or_b32 s53, s53, s57
        s_cbranch_scc1 L_qsp
        L_qpoll:
        global_load_dwordx4 v[8:11], v4, s[28:29] sc1
        global_load_dwordx4 v[12:15], v4, s[28:29] offset:2048 sc1
        s_add_u32 s62, s62, 64
        s_cmp_gt_u32 s62, 0x400000
        s_cbranch_scc1 L_end
        s_waitcnt vmcnt(0)
        v_xor_b32 v6, s60, v9
        v_xor_b32 v7, s61, v11
        v_xor_b32 v16, s60, v13
        v_xor_b32 v17, s61, v15
        v_or3_b32 v6, v6, v7, v16
        v_or_b32 v6, v6, v17
        v_cmp_ne_u32 vcc, 0, v6
        s_cbranch_vccnz L_qpoll
        L_qskip:
        v_add_f32 v8, v8, v12
        v_add_f32 v10, v10, v14
        s_nop 1
        v_permlane32_swap_b32 v8, v10
        v_add_f32 v8, v8, v10
        v_cvt_pk_bf16_f32 v8, v8, v8
        ds_write_b16 v5, v8
        """)
        self.lds_signal(F_Q, 6)
        self.stamp(5)
        A(f"""
        v_lshrrev_b32 v2, 4, v0
        v_and_b32 v3, 15, v0
        v_bfe_u32 v4, v0, 3, 1
        v_lshlrev_b32 v4, 8, v4
        v_lshl_add_u32 v4, v2, 4, v4
        v_add_u32 v4, {QS}, v4
        v_and_b32 v5, 3, v0
        v_bfe_u32 v6, v0, 2, 2
        v_lshl_add_u32 v5, v5, 2, v6
        v_lshlrev_b32 v5, 8, v5
        v_xor_b32 v6, v2, v3
        v_lshl_add_u32 v5, v6, 4, v5
        s_lshl_b32 s44, s3, 15
        v_add_u32 v8, s44, v5
        v_xor_b32 v9, 64, v8
        v_xor_b32 v10, 0x80, v8
        v_xor_b32 v11, 0xc0, v8
        """)
        self.lds_wait(F_Q, 4, 6)
        for t in range(4):
            A(f"ds_read_b128 v[{16+4*t}:{19+4*t}], v4 offset:{64*t}")
        self.lds_wait(F_K, 8, 6, sleep=1)
        self.stamp(6)
        def kread(tau):
            for t in range(4):
                r = 64 + ((tau % 4) * 4 + t) * 4
                A(f"ds_read_b128 v[{r}:{r+3}], v{8+t} offset:{4096*tau}")
        for tau in range(2): kread(tau)
        for tau in range(8):
            if tau + 2 < 8: kread(tau + 2)
            out = min(2, 7 - tau) * 4
            for t in range(4):
                r = 64 + ((tau % 4) * 4 + t) * 4
                A(f"s_waitcnt lgkmcnt({min(15, out + 3 - t)})")
                c = "0" if t == 0 else f"v[{32+4*tau}:{35+4*tau}]"
                A(f"v_mfma_f32_16x16x32_bf16 v[{32+4*tau}:{35+4*tau}], v[{r}:{r+3}], v[{16+4*t}:{19+4*t}], {c}")
        A("s_nop 7")
        A("s_mov_b32 s44, 0x02020202")
        for tau in range(1, 8):
            A(f"""
            s_mov_b32 exec_lo, s44
            s_mov_b32 exec_hi, s44
            v_mov_b32 v32, v{32+4*tau}
            v_mov_b32 v33, v{33+4*tau}
            v_mov_b32 v34, v{34+4*tau}
            v_mov_b32 v35, v{35+4*tau}
            s_lshl_b32 s44, s44, 1
            """)
        A("s_mov_b64 exec, -1")
        A("v_mov_b32 v2, 0x3db504f3")
        for i in (32, 34):
            self.rb2(i, i + 1)
            A(f"v_mul_f32 v{i}, v{i}, v2\nv_mul_f32 v{i+1}, v{i+1}, v2")
            self.rb2(i, i + 1)
        mx = "v_max_f32_dpp v3, v3, v3"
        A(f"""
        v_max_f32 v3, v32, v33
        v_max3_f32 v3, v3, v34, v35
        v_bfe_u32 v5, v0, 3, 1
        v_lshlrev_b32 v5, 4, v5
        {mx} quad_perm:[1,0,3,2] row_mask:0xf bank_mask:0xf
        v_add_u32 v5, {MA}, v5
        s_lshl_b32 s44, s3, 2
        {mx} quad_perm:[2,3,0,1] row_mask:0xf bank_mask:0xf
        v_add_u32 v6, s44, v5
        s_nop 0
        {mx} row_half_mirror row_mask:0xf bank_mask:0xf
        s_nop 0
        v_mov_b32 v4, v3
        s_nop 1
        v_permlane32_swap_b32 v3, v4
        v_max_f32 v3, v3, v4
        v_mov_b32 v4, v3
        s_nop 1
        v_permlane16_swap_b32 v3, v4
        v_max_f32 v3, v3, v4
        ds_write_b32 v6, v3
        """)
        self.lds_signal(F_M, 8)
        A(f"""
        v_bfe_u32 v7, v0, 3, 1
        v_lshlrev_b32 v7, 11, v7
        v_lshrrev_b32 v8, 4, v0
        v_lshl_add_u32 v7, v8, 6, v7
        v_bfe_u32 v8, v0, 2, 1
        v_lshl_add_u32 v7, v8, 8, v7
        v_and_b32 v8, 3, v0
        v_lshl_add_u32 v7, v8, 4, v7
        s_lshl_b32 s44, s3, 9
        s_add_u32 s44, s44, {PB}
        v_add_u32 v14, s44, v7
        """)
        self.lds_wait(F_M, 4, 8)
        sm = "v_add_f32_dpp v12, v12, v12"
        A(f"""
        ds_read_b128 v[8:11], v5
        v_mov_b32 v2, 0x3fb8aa3b
        s_waitcnt lgkmcnt(0)
        v_max_f32 v3, v8, v9
        v_max3_f32 v3, v3, v10, v11
        v_mul_f32 v4, v3, v2
        v_fma_f32 v32, v32, v2, -v4
        v_fma_f32 v33, v33, v2, -v4
        v_fma_f32 v34, v34, v2, -v4
        v_fma_f32 v35, v35, v2, -v4
        v_exp_f32 v32, v32
        v_exp_f32 v33, v33
        v_exp_f32 v34, v34
        v_exp_f32 v35, v35
        v_add_f32 v12, v32, v33
        v_cvt_pk_bf16_f32 v36, v32, v32
        v_add_f32 v13, v34, v35
        v_cvt_pk_bf16_f32 v37, v33, v33
        v_add_f32 v12, v12, v13
        v_cvt_pk_bf16_f32 v38, v34, v34
        v_cvt_pk_bf16_f32 v39, v35, v35
        {sm} quad_perm:[1,0,3,2] row_mask:0xf bank_mask:0xf
        ds_write_b128 v14, v[36:39]
        s_nop 0
        {sm} quad_perm:[2,3,0,1] row_mask:0xf bank_mask:0xf
        s_nop 1
        {sm} row_half_mirror row_mask:0xf bank_mask:0xf
        s_nop 0
        v_mov_b32 v13, v12
        s_nop 1
        v_permlane32_swap_b32 v12, v13
        v_add_f32 v12, v12, v13
        v_mov_b32 v13, v12
        s_nop 1
        v_permlane16_swap_b32 v12, v13
        v_add_f32 v12, v12, v13
        ds_write_b32 v6, v12 offset:{LA-MA}
        """)
        self.lds_signal(F_P, 6, rtn=True)
        A(f"""
        s_waitcnt lgkmcnt(0)
        v_readfirstlane_b32 s46, v7
        s_nop 0
        s_cmp_lg_u32 s46, 3
        s_cbranch_scc1 L_A_noml
        ds_read_b128 v[12:15], v5 offset:{LA-MA}
        v_mov_b32 v8, v3
        v_mov_b32 v9, s60
        v_mov_b32 v11, s61
        s_lshl_b32 s44, s32, 4
        s_add_u32 s44, s44, s30
        s_lshl_b32 s44, s44, 7
        s_lshl_b32 s45, s33, 4
        s_add_u32 s44, s44, s45
        s_add_u32 s44, s44, {W_ML}
        v_bfe_u32 v5, v0, 3, 1
        v_lshlrev_b32 v5, 6, v5
        v_add_u32 v5, s44, v5
        s_mov_b64 exec, 0x101
        s_waitcnt lgkmcnt(0)
        v_add_f32 v12, v12, v13
        v_add_f32 v14, v14, v15
        v_add_f32 v10, v12, v14
        global_store_dwordx4 v5, v[8:11], s[28:29] sc1
        s_mov_b64 exec, -1
        L_A_noml:
        """)
        self.stamp(9)
        A(f"""
        s_lshl_b32 s44, s30, 8
        s_lshl_b32 s45, s33, 6
        s_add_u32 s44, s44, s45
        s_lshl_b32 s45, s3, 4
        s_add_u32 s44, s44, s45
        s_mul_i32 s44, s44, 1152
        s_add_u32 s40, s12, s44
        s_addc_u32 s41, s13, 0
        s_movk_i32 s42, {16*1152}
        v_lshlrev_b32 v1, 4, v0
        v_lshrrev_b32 v2, 3, v0
        v_bfe_u32 v3, v0, 4, 2
        v_lshlrev_b32 v3, 1, v3
        v_and_b32 v4, 7, v0
        v_xor_b32 v3, v3, v4
        v_lshlrev_b32 v3, 4, v3
        v_mul_u32_u24 v2, 1152, v2
        v_add_u32 v2, v2, v3
        v_add_u32 v2, 0x400, v2
        """)
        self.proj_setup(wexpr="s3", wadd=0)
        self.lds_wait(F_P, 4, 6)
        if self.o.get('wolast'): self.lds_wait(F_VI, 8, 6, sleep=1)
        self.stamp(10)
        wo_pol = self.o.get("wo", "nt")
        A(f"""
        {'s_branch L_wodone' if self.o.get('nowo') else ''}
        s_mul_i32 m0, s3, {16*WO_PITCH}
        s_mov_b32 s44, 0
        L_woloop:
        {'s_waitcnt vmcnt(%d)' % (int(self.o.get('wopace'))-1) if self.o.get('wopace') else ''}
        buffer_load_dwordx4 v1, s[40:43], s44 offen {wo_pol} lds
        s_add_u32 m0, m0, {WO_PITCH}
        s_add_u32 s44, s44, 1152
        s_cmp_lt_u32 s44, {16*1152}
        s_cbranch_scc1 L_woloop
        s_lshl_b32 s44, s3, 11
        s_add_u32 m0, s44, {WO_LEFT}
        s_movk_i32 s44, {8*1152}
        buffer_load_dwordx4 v2, s[40:43], 0 offen {wo_pol} lds
        s_add_u32 m0, m0, 0x400
        s_nop 0
        buffer_load_dwordx4 v2, s[40:43], s44 offen {wo_pol} lds
        L_wodone:
        s_waitcnt vmcnt(0)
        """)
        self.lds_signal(F_WO, 6)
        self.gen_proj()

    def _qmf(self, ct, outstanding):
        A = self.A
        base = 56 + 18 * ct
        d = f"v[{36+4*ct}:{39+4*ct}]"
        A(f"s_waitcnt lgkmcnt({outstanding})")
        for k in range(4):
            A(f"v_mfma_f32_16x16x32_bf16 {d}, v[{base+4*k}:{base+4*k+3}], v[{16+4*k}:{19+4*k}], {d}")
        A("s_nop 5")
        A(f"v_mfma_f32_16x16x16_bf16 {d}, v[{base+16}:{base+17}], v[32:33], {d}")

    def gen_M(self):
        A = self.A
        A(f"""
        L_M:
        {'s_branch L_end' if self.o.get('nom') else ''}
        s_sub_u32 s34, s3, 4
        """)
        A(f"""
        s_cmp_lt_u32 s2, 144
        s_cbranch_scc1 L_M_mlp
        s_cmp_eq_u32 s34, 1
        s_cbranch_scc0 L_end
        """)
        self.lds_wait(F_X, 4, 4, sleep=1)
        self.read_tag(4)
        A(f"""
        s_branch L_M1
        L_M_mlp:
        s_mul_i32 s58, s2, 1821
        s_lshr_b32 s58, s58, 16
        s_mul_i32 s59, s58, 36
        s_sub_u32 s59, s2, s59
        s_lshl_b32 s44, s34, 6
        v_add_u32 v1, s44, v0
        v_lshlrev_b32 v14, 2, v1
        v_lshlrev_b32 v1, 4, v1
        v_add_u32 v15, 0x1000, v1
        v_add_u32 v14, 0x2000, v14
        """)
        self.lds_wait(F_X, 4, 4, sleep=1)
        for (p, r) in (("s[16:17]", 96), ("s[18:19]", 106), ("s[20:21]", 116)):
            A(f"""
            global_load_dwordx4 v[{r}:{r+3}], v1, {p} SMALLPOL
            global_load_dwordx4 v[{r+4}:{r+7}], v15, {p} SMALLPOL
            global_load_dword v{r+8}, v14, {p} SMALLPOL
            """)
        self.read_tag(4)
        A(f"""
        s_mul_i32 s44, s58, 1152
        s_add_u32 s44, s44, {XN}
        v_lshlrev_b32 v1, 4, v0
        v_lshlrev_b32 v14, 1, v0
        v_add_u32 v11, s44, v1
        v_add_u32 v12, s44, v14
        ds_read_b128 v[16:19], v11
        ds_read_u16 v20, v12 offset:1024
        s_waitcnt lgkmcnt(0)
        """)
        self.unpack9(16, 20)
        A("s_call_b64 s[50:51], L_ln")
        A(f"""
        v_lshlrev_b32 v11, 5, v0
        v_add_u32 v11, {HB}, v11
        v_lshlrev_b32 v12, 2, v0
        v_add_u32 v12, {HB}, v12
        ds_write_b128 v11, v[2:5]
        ds_write_b128 v11, v[6:9] offset:16
        ds_write_b32 v12, v10 offset:2048
        s_lshl_b32 s44, s59, 6
        s_add_u32 s44, s44, {HB}
        v_mov_b32 v1, s44
        s_waitcnt vmcnt(0)
        """)
        self.stamp(1)
        for (r, dst) in ((96, 32), (106, 50), (116, 68)):
            for i in range(9):
                A(f"v_lshlrev_b32 v{dst+2*i}, 16, v{r+i}\nv_and_b32 v{dst+2*i+1}, 0xffff0000, v{r+i}")
        import math, struct
        K0 = -2.0 * math.sqrt(2.0 / math.pi) * math.log2(math.e)
        K1 = K0 * 0.044715
        f2u = lambda f: struct.unpack("<I", struct.pack("<f", f))[0]
        A(f"""
        v_mov_b32 v2, {f2u(K0):#x}
        v_mov_b32 v3, {f2u(K1):#x}
        v_lshrrev_b32 v14, 4, v0
        s_lshl_b32 s44, s34, 4
        s_add_u32 s44, s44, {GP}
        v_lshlrev_b32 v14, 2, v14
        v_add_u32 v14, s44, v14
        s_mov_b32 s47, 0
        s_mov_b32 s48, 0x00010001
        s_mov_b32 s49, 0x00010001
        s_waitcnt lgkmcnt(0)
        ds_read_b32 v4, v1
        L_mlp:
        v_mov_b32 v6, 0
        v_mov_b32 v7, 0
        s_waitcnt lgkmcnt(0)
        """)
        for grp in range(3):
            ks = [3 * grp + j for j in range(3)]
            U = lambda j: f"v[{8+2*j}:{9+2*j}]"
            T = lambda j: f"v[{16+2*j}:{17+2*j}]"
            P = lambda base, k: f"v[{base+2*k}:{base+2*k+1}]"
            for j, k in enumerate(ks): A(f"v_pk_fma_f32 {U(j)}, {P(32,k)}, v[4:5], {P(50,k)} op_sel_hi:[1,0,1]")
            for j, k in enumerate(ks): A(f"v_pk_mul_f32 {T(j)}, {U(j)}, {U(j)}")
            for j, k in enumerate(ks): A(f"v_pk_fma_f32 {T(j)}, {T(j)}, v[2:3], v[2:3] op_sel:[0,1,0] op_sel_hi:[1,1,0]")
            for j, k in enumerate(ks): A(f"v_pk_mul_f32 {T(j)}, {T(j)}, {U(j)}")
            for j, k in enumerate(ks): A(f"v_exp_f32 v{16+2*j}, v{16+2*j}\nv_exp_f32 v{17+2*j}, v{17+2*j}")
            for j, k in enumerate(ks): A(f"v_pk_mul_f32 {U(j)}, {U(j)}, {P(68,k)}")
            for j, k in enumerate(ks): A(f"v_pk_add_f32 {T(j)}, {T(j)}, 1.0 op_sel_hi:[1,0]")
            for j, k in enumerate(ks): A(f"v_rcp_f32 v{16+2*j}, v{16+2*j}\nv_rcp_f32 v{17+2*j}, v{17+2*j}")
            if grp == 2:
                A("v_add_u32 v1, 4, v1\nds_read_b32 v4, v1")
            else:
                A("s_nop 0")
            for j, k in enumerate(ks): A(f"v_pk_fma_f32 v[6:7], {U(j)}, {T(j)}, v[6:7]")
        ins = "v_add_f32_dpp v6, v6, v6"
        A(f"""
        v_add_f32 v6, v6, v7
        s_nop 1
        {ins} quad_perm:[1,0,3,2] row_mask:0xf bank_mask:0xf
        s_nop 1
        {ins} quad_perm:[2,3,0,1] row_mask:0xf bank_mask:0xf
        s_nop 1
        {ins} row_half_mirror row_mask:0xf bank_mask:0xf
        s_nop 1
        {ins} row_mirror row_mask:0xf bank_mask:0xf
        s_mov_b64 exec, s[48:49]
        ds_write_b32 v14, v6
        s_mov_b64 exec, -1
        v_add_u32 v14, 64, v14
        s_add_u32 s47, s47, 1
        s_cmp_lt_u32 s47, {self.o.get('mlpn', 16)}
        s_cbranch_scc1 L_mlp
        s_waitcnt lgkmcnt(0)
        """)
        self.lds_signal(F_G, 8)
        self.stamp(2)
        A("""
        s_cmp_eq_u32 s34, 0
        s_cbranch_scc1 L_M0
        s_cmp_eq_u32 s34, 1
        s_cbranch_scc0 L_end
        L_M1:
        s_setprio 3
        """)
        A(f"""
        s_lshl_b32 s44, s32, 4
        s_add_u32 s44, s44, s30
        s_lshl_b32 s45, s44, 7
        s_lshr_b32 s46, s33, 1
        s_lshl_b32 s46, s46, 6
        s_add_u32 s45, s45, s46
        s_add_u32 s45, s45, {W_ML}
        v_lshrrev_b32 v2, 4, v0
        s_add_u32 s48, s28, s45
        s_addc_u32 s49, s29, 0
        s_lshl_b32 s44, s44, 13
        s_lshl_b32 s45, s33, 11
        s_add_u32 s44, s44, s45
        s_add_u32 s44, s44, {W_O}
        v_and_b32 v4, 15, v0
        v_lshlrev_b32 v5, 9, v2
        v_lshl_add_u32 v5, v4, 4, v5
        v_add_u32 v5, s44, v5
        """)
        A(f"""
        v_bfe_u32 v6, v0, 4, 1
        v_lshlrev_b32 v6, 5, v6
        v_bfe_u32 v7, v0, 1, 2
        v_lshl_add_u32 v6, v7, 3, v6
        v_bfe_u32 v7, v0, 3, 1
        v_lshl_add_u32 v6, v7, 2, v6
        v_and_b32 v7, 1, v0
        v_lshl_add_u32 v6, v7, 1, v6
        v_lshrrev_b32 v7, 5, v0
        v_add_u32 v6, v6, v7
        v_lshlrev_b32 v6, 1, v6
        v_add_u32 v6, {OB}, v6
        v_mov_b32 v20, {F_OB}
        v_mov_b32 v21, 1
        """)
        self.lds_wait(F_P, 4, 8, sleep=2)
        A(f"""
        {'s_branch L_end' if self.o.get('notail') else ''}
        L_mlpoll:
        s_load_dwordx16 s[4:19], s[48:49], 0 glc
        s_add_u32 s62, s62, 16
        s_cmp_gt_u32 s62, 0x400000
        s_cbranch_scc1 L_end
        s_sleep 2
        s_waitcnt lgkmcnt(0)
        s_mov_b32 s44, 0
        s_xor_b32 s45, s5, s60
        s_or_b32 s44, s44, s45
        s_xor_b32 s45, s7, s61
        s_or_b32 s44, s44, s45
        s_xor_b32 s45, s9, s60
        s_or_b32 s44, s44, s45
        s_xor_b32 s45, s11, s61
        s_or_b32 s44, s44, s45
        s_xor_b32 s45, s13, s60
        s_or_b32 s44, s44, s45
        s_xor_b32 s45, s15, s61
        s_or_b32 s44, s44, s45
        s_xor_b32 s45, s17, s60
        s_or_b32 s44, s44, s45
        s_xor_b32 s45, s19, s61
        s_or_b32 s44, s44, s45
        s_cbranch_scc1 L_mlpoll
        v_cmp_eq_u32 s[52:53], 1, v2
        v_cmp_eq_u32 s[54:55], 2, v2
        v_cmp_eq_u32 s[56:57], 3, v2
        v_mov_b32 v8, s4
        v_mov_b32 v10, s6
        v_mov_b32 v9, s8
        v_mov_b32 v11, s10
        v_cndmask_b32 v8, v8, v9, s[52:53]
        v_cndmask_b32 v10, v10, v11, s[52:53]
        v_mov_b32 v9, s12
        v_mov_b32 v11, s14
        v_cndmask_b32 v8, v8, v9, s[54:55]
        v_cndmask_b32 v10, v10, v11, s[54:55]
        v_mov_b32 v9, s16
        v_mov_b32 v11, s18
        v_cndmask_b32 v8, v8, v9, s[56:57]
        v_cndmask_b32 v10, v10, v11, s[56:57]
        v_mov_b32 v12, v8
        v_mov_b32 v13, v8
        s_nop 1
        v_permlane32_swap_b32 v12, v13
        v_max_f32 v12, v12, v13
        v_mov_b32 v13, v12
        s_nop 1
        v_permlane16_swap_b32 v12, v13
        v_max_f32 v12, v12, v13
        v_sub_f32 v12, v8, v12
        v_mul_f32 v12, 0x3fb8aa3b, v12
        v_exp_f32 v12, v12
        s_nop 0
        v_mul_f32 v13, v12, v10
        v_mov_b32 v14, v13
        s_nop 1
        v_permlane32_swap_b32 v13, v14
        v_add_f32 v13, v13, v14
        v_mov_b32 v14, v13
        s_nop 1
        v_permlane16_swap_b32 v13, v14
        v_add_f32 v13, v13, v14
        v_rcp_f32 v13, v13
        s_nop 0
        v_mul_f32 v22, v12, v13
        """)
        self.stamp(3)
        self.lds_wait(F_OP, 1, 8, sleep=1)
        A(f"""
        L_opoll:
        global_load_dwordx4 v[8:11], v5, s[28:29] sc1
        global_load_dwordx4 v[12:15], v5, s[28:29] offset:256 sc1
        s_add_u32 s62, s62, 64
        s_cmp_gt_u32 s62, 0x400000
        s_cbranch_scc1 L_end
        s_waitcnt vmcnt(0)
        v_xor_b32 v16, s60, v9
        v_xor_b32 v17, s61, v11
        v_xor_b32 v18, s60, v13
        v_xor_b32 v19, s61, v15
        v_or3_b32 v16, v16, v17, v18
        v_or_b32 v16, v16, v19
        v_cmp_ne_u32 vcc, 0, v16
        s_cbranch_vccnz L_opoll
        v_mul_f32 v8, v8, v22
        v_mul_f32 v10, v10, v22
        v_mul_f32 v12, v12, v22
        v_mul_f32 v14, v14, v22
        s_nop 0
        v_permlane32_swap_b32 v8, v10
        v_permlane32_swap_b32 v12, v14
        v_add_f32 v8, v8, v10
        v_add_f32 v12, v12, v14
        s_nop 1
        v_permlane16_swap_b32 v8, v12
        v_add_f32 v8, v8, v12
        v_cvt_pk_bf16_f32 v8, v8, v8
        ds_write_b16 v6, v8
        s_mov_b64 exec, 1
        ds_write_b32 v20, v21
        s_mov_b64 exec, -1
        """)
        self.stamp(4)
        A("s_branch L_end")
        A(f"""
        L_M0:
        s_setprio 3
        v_and_b32 v2, 7, v0
        v_lshrrev_b32 v3, 5, v0
        v_lshl_add_u32 v2, v2, 1, v3
        s_mul_i32 s44, s58, 1152
        s_lshl_b32 s45, s59, 5
        s_add_u32 s44, s44, s45
        v_lshlrev_b32 v3, 1, v2
        v_add_u32 v3, s44, v3
        global_load_ushort v4, v3, s[4:5]
        v_mov_b32 v5, 0
        global_load_ushort v5, v5, s[22:23]
        v_lshlrev_b32 v6, 6, v2
        v_add_u32 v6, {GP}, v6
        s_lshl_b32 s44, s2, 13
        s_add_u32 s44, s44, {W_S}
        v_lshlrev_b32 v7, 4, v0
        v_add_u32 v7, s44, v7
        v_add_u32 v1, 0x1000, v7
        """)
        self.lds_wait(F_G, 4, 8, sleep=1)
        A(f"""
        ds_read_b128 v[8:11], v6
        ds_read_b128 v[12:15], v6 offset:16
        ds_read_b128 v[16:19], v6 offset:32
        ds_read_b128 v[20:23], v6 offset:48
        s_waitcnt lgkmcnt(0)
        """)
        for i in range(9, 24): A(f"v_add_f32 v8, v8, v{i}")
        self.rb(8)
        A("""
        s_waitcnt vmcnt(0)
        v_lshlrev_b32 v4, 16, v4
        v_lshlrev_b32 v5, 16, v5
        v_add_f32 v8, v8, v5
        """)
        self.rb(8)
        A("""
        v_mul_f32 v9, 0xbfb8aa3b, v8
        v_exp_f32 v9, v9
        s_nop 0
        v_add_f32 v9, 1.0, v9
        v_rcp_f32 v9, v9
        s_nop 0
        v_mul_f32 v5, v8, v9
        """)
        self.rb(5)
        A("""
        v_bfe_u32 v8, v0, 3, 2
        v_cmp_eq_u32 s[52:53], 0, v8
        """)
        self.stamp(3)
        if self.o.get('notail'): A("s_branch L_end")
        self.lds_wait(F_PJ, 12, 8, sleep=1)
        self.stamp(4)
        A("L_spoll:")
        for n in range(8):
            A(f"global_load_dwordx4 v[{32+4*n}:{35+4*n}], {'v7' if n < 4 else 'v1'}, s[28:29] offset:{(n%4)*1024} sc1")
        A(f"""
        s_add_u32 s62, s62, 64
        s_cmp_gt_u32 s62, 0x400000
        s_cbranch_scc1 L_end
        v_mov_b32 v8, 0
        v_mov_b32 v10, 0
        v_mov_b32 v11, 0
        """)
        for n in range(8):
            A(f"""
            s_waitcnt vmcnt({7-n})
            v_xor_b32 v9, s60, v{33+4*n}
            v_xor_b32 v12, s61, v{35+4*n}
            v_or3_b32 v8, v8, v9, v12
            v_add_f32 v10, v10, v{32+4*n}
            v_add_f32 v11, v11, v{34+4*n}
            """)
        A(f"""
        v_cmp_ne_u32 vcc, 0, v8
        s_cbranch_vccnz L_spoll
        s_nop 0
        v_permlane32_swap_b32 v10, v11
        v_add_f32 v10, v10, v11
        v_mov_b32 v11, v10
        s_nop 1
        v_permlane16_swap_b32 v10, v11
        v_add_f32 v10, v10, v11
        s_nop 1
        v_add_f32_dpp v10, v10, v10 row_ror:8 row_mask:0xf bank_mask:0xf
        """)
        self.rb(10)
        A("v_mul_f32 v10, v10, v5")
        self.rb(10)
        A(f"""
        v_add_f32 v10, v10, v4
        v_cvt_pk_bf16_f32 v10, v10, v10
        s_mov_b64 exec, s[52:53]
        global_store_short v3, v10, s[24:25]
        s_mov_b64 exec, -1
        """)
        self.stamp(5)
        A(f"""
        s_cmp_lg_u32 s2, 0
        s_cbranch_scc1 L_end
        v_mov_b32 v8, 0
        v_mov_b32 v10, s60
        v_mov_b32 v11, s61
        s_mov_b64 exec, 1
        global_store_dwordx2 v8, v[10:11], s[28:29] offset:{W_EPOCH}
        s_mov_b64 exec, -1
        """)

if __name__ == "__main__":
    import argparse
    ap = argparse.ArgumentParser()
    ap.add_argument("--out", default="recurrent_scan__sliding_block_cached__mixer_token_mlp__decode.s")
    ap.add_argument("--stamps", action="store_true")
    ap.add_argument("--depth", type=int, default=4)
    ap.add_argument("--opt", action="append", default=[])
    a = ap.parse_args()
    opts = dict(x.split("=", 1) for x in a.opt)
    open(a.out, "w").write(G(a.stamps, a.depth, opts).gen())
```

```python
import sys
NAME = "recurrent_scan__sliding_block_cached__mixer_token_mlp__decode_kernel"

KBUF = 0
WQ   = 131072
PB   = WQ
OPART = WQ + 4096
XN   = WQ + 18432
HB   = XN + 4608
QS   = HB + 2304
GP   = QS + 512
INIT = GP + 1024
F_X, F_Q, F_K, F_M, F_P, F_VI, F_WO, F_O, F_OB, F_G, F_T, F_OP, F_PJ, F_WQ, F_QP = [INIT + 4 * i for i in range(15)]
TAG  = INIT + 64
LSUM = INIT + 80
MA   = INIT + 96
LA   = INIT + 384
ZERO = INIT + 128
OB   = INIT + 256
OACC = INIT + 1024
LDS_BYTES = INIT + 2048
assert LDS_BYTES <= 163840, LDS_BYTES
WO_PITCH = 1056
WO_LEFT = 64 * WO_PITCH
W_EPOCH = 0
W_Q  = 0x1000
W_ML = 0x90000
W_O  = 0xA0000
W_S  = 0x140000
W_END = W_S + 144 * 8192
STAMP_OFF = 0x10000000

class G:
    def __init__(self, stamps=False, depth=4, opts=None):
        self.L = []
        self.stamps = stamps
        self.depth = depth
        self.o = opts or {}
        self.uid = 0
    def A(self, s):
        for line in s.strip("\n").split("\n"):
            self.L.append("  " + line.strip() if not line.strip().endswith(":") else line.strip())
    def lab(self, p="L"):
        self.uid += 1
        return f"{p}_{self.uid}"
    def stamp(self, i):
        if self.stamps:
            self.A(f"s_memrealtime s[{64+2*i}:{65+2*i}]\ns_waitcnt lgkmcnt(0)")
    def lds_wait(self, addr, val, vt, sleep=0):
        l = self.lab("LW")
        self.A(f"""
        v_mov_b32 v{vt}, {addr}
        {l}:
        ds_read_b32 v{vt+1}, v{vt}
        s_add_u32 s62, s62, 1
        s_cmp_gt_u32 s62, 0x400000
        s_cbranch_scc1 L_end
        """)
        sleep = max(sleep, int(self.o.get('minsleep', 0)))
        if sleep: self.A(f"s_sleep {sleep}")
        self.A(f"""
        s_waitcnt lgkmcnt(0)
        v_readfirstlane_b32 s46, v{vt+1}
        s_nop 0
        s_cmp_lt_u32 s46, {val}
        s_cbranch_scc1 {l}
        """)
    def lds_signal(self, addr, vt, rtn=False):
        self.A(f"""
        v_mov_b32 v{vt}, {addr}
        v_mov_b32 v{vt+1}, 1
        s_mov_b64 exec, 1
        """)
        if rtn:
            self.A(f"ds_add_rtn_u32 v{vt+1}, v{vt}, v{vt+1}")
        else:
            self.A(f"ds_add_u32 v{vt}, v{vt+1}")
        self.A("s_mov_b64 exec, -1")
    def wave_sum(self, v, s, op="add"):
        ins = f"v_{op}_f32_dpp v{v}, v{v}, v{v}"
        self.A(f"""
        s_nop 1
        {ins} quad_perm:[1,0,3,2] row_mask:0xf bank_mask:0xf
        s_nop 1
        {ins} quad_perm:[2,3,0,1] row_mask:0xf bank_mask:0xf
        s_nop 1
        {ins} row_half_mirror row_mask:0xf bank_mask:0xf
        s_nop 1
        {ins} row_mirror row_mask:0xf bank_mask:0xf
        s_nop 1
        {ins} row_bcast:15 row_mask:0xa bank_mask:0xf
        s_nop 1
        {ins} row_bcast:31 row_mask:0xc bank_mask:0xf
        s_nop 0
        v_readlane_b32 s{s}, v{v}, 63
        s_nop 1
        """)
    def rb(self, v):
        self.A(f"v_cvt_pk_bf16_f32 v{v}, v{v}, v{v}\nv_and_b32 v{v}, 0xffff0000, v{v}")
    def rb2(self, a, b):
        self.A(f"""
        v_cvt_pk_bf16_f32 v{b}, v{a}, v{b}
        v_lshlrev_b32 v{a}, 16, v{b}
        v_and_b32 v{b}, 0xffff0000, v{b}
        """)
    def read_tag(self, vt):
        self.A(f"""
        v_mov_b32 v{vt}, {TAG}
        ds_read_b64 v[{vt}:{vt+1}], v{vt}
        s_waitcnt lgkmcnt(0)
        v_readfirstlane_b32 s60, v{vt}
        v_readfirstlane_b32 s61, v{vt+1}
        s_nop 1
        """)

    def gen(self):
        A = self.A
        D = self.depth
        hdr = open("recurrent_scan__sliding_block_cached__mixer_token_mlp__decode.s.ref").read().split("\n")
        for line in hdr:
            if line.startswith("; @launch"):
                self.L.append(f"; @launch grid=(256,1,1) block=(1024,1,1) lds={LDS_BYTES}")
                break
            self.L.append(line)
        self.L += ['.amdgcn_target "amdgcn-amd-amdhsa--gfx950"', ".text", f".globl {NAME}", ".p2align 8",
                   f".type {NAME},@function", f"{NAME}:"]
        if self.o.get("dbgtime"):
            A("s_memrealtime s[64:65]\ns_memtime s[66:67]")
        if self.stamps:
            A("s_memrealtime s[64:65]")
            for i in range(66, 96): A(f"s_mov_b32 s{i}, 0")
        A(f"""
        s_cmp_ge_u32 s2, 256
        s_cbranch_scc1 L_exit
        s_load_dwordx16 s[4:19], s[0:1], 0
        s_load_dwordx8 s[20:27], s[0:1], 64
        s_load_dwordx2 s[28:29], s[0:1], 96
        v_lshrrev_b32 v1, 6, v0
        v_and_b32 v0, 63, v0
        v_readfirstlane_b32 s3, v1
        s_and_b32 s30, s2, 15
        s_lshr_b32 s31, s2, 4
        s_lshr_b32 s32, s31, 2
        s_and_b32 s33, s31, 3
        s_mov_b32 s62, 0
        s_mov_b32 s39, 0x20000
        s_mov_b32 s43, 0x20000
        s_cmp_lg_u32 s3, 0
        s_cbranch_scc1 L_noinit
        v_lshlrev_b32 v1, 4, v0
        v_mov_b32 v4, 0
        v_mov_b32 v5, 0
        v_mov_b32 v6, 0
        v_mov_b32 v7, 0
        """)
        A(f"""
        v_add_u32 v1, {INIT}, v1
        ds_write_b128 v1, v[4:7]
        ds_write_b128 v1, v[4:7] offset:1024
        s_waitcnt lgkmcnt(0)
        L_noinit:
        s_barrier
        s_waitcnt lgkmcnt(0)
        {('s_add_u32 s28, s28, %s' % self.o['wsoff']) if self.o.get('wsoff') else ''}
        {'s_addc_u32 s29, s29, 0' if self.o.get('wsoff') else ''}
        s_cmp_lt_u32 s3, 4
        s_cbranch_scc0 L_nox
        s_mul_i32 s44, s3, 1152
        s_add_u32 s36, s4, s44
        s_addc_u32 s37, s5, 0
        s_movk_i32 s38, 1152
        v_lshlrev_b32 v1, 4, v0
        v_lshlrev_b32 v14, 1, v0
        buffer_load_dwordx4 v[16:19], v1, s[36:39], 0 offen SMALLPOL
        buffer_load_ushort v20, v14, s[36:39], 0 offen offset:1024 SMALLPOL
        s_load_dwordx2 s[60:61], s[28:29], {W_EPOCH}
        L_nox:
        s_lshr_b32 s46, s2, 3
        v_lshlrev_b32 v2, 4, v0
        s_cmp_lg_u32 s3, 7
        s_cbranch_scc1 L_nowarmc
        s_cmp_lt_u32 s46, (L_code_end-{NAME})>>10
        s_cbranch_scc0 L_nowarmc
        s_getpc_b64 s[44:45]
        L_pc:
        s_sub_u32 s44, s44, L_pc-{NAME}
        s_subb_u32 s45, s45, 0
        s_lshl_b32 s46, s46, 10
        v_add_u32 v2, s46, v2
        global_load_dwordx4 v[60:63], v2, s[44:45]
        L_nowarmc:
        s_cmp_lg_u32 s3, 6
        s_cbranch_scc1 L_nowarmw
        s_cmp_lt_u32 s46, 27
        s_cbranch_scc0 L_nowarmw
        s_mov_b64 s[44:45], s[16:17]
        s_cmp_lt_u32 s46, 9
        s_cbranch_scc1 L_warmw
        s_mov_b64 s[44:45], s[18:19]
        s_sub_u32 s46, s46, 9
        s_cmp_lt_u32 s46, 9
        s_cbranch_scc1 L_warmw
        s_mov_b64 s[44:45], s[20:21]
        s_sub_u32 s46, s46, 9
        L_warmw:
        s_lshl_b32 s46, s46, 10
        v_add_u32 v2, s46, v2
        global_load_dwordx4 v[60:63], v2, s[44:45] SMALLPOL
        L_nowarmw:
        s_cmp_lt_u32 s3, 8
        s_cbranch_scc1 L_service
        """)
        self.gen_S()
        A("L_service:")
        if self.o.get('sonly'): A("s_branch L_end")
        A(f"""
        s_cmp_lt_u32 s3, 4
        s_cbranch_scc0 L_M
        s_setprio {self.o.get('prioA','3')}
        """)
        self.gen_A()
        self.gen_LN()
        self.gen_M()
        A("L_end:")
        if self.o.get("dbgtime"):
            A("""
            s_mov_b64 exec, 1
            s_memrealtime s[68:69]
            s_memtime s[70:71]
            s_waitcnt lgkmcnt(0)
            s_not_b32 s72, s64
            v_mov_b32 v4, 0
            v_mov_b32 v6, s72
            v_mov_b32 v7, s68
            global_atomic_umax v4, v6, s[26:27]
            global_atomic_umax v4, v7, s[26:27] offset:4
            s_lshl_b32 s44, s3, 2
            v_mov_b32 v5, s44
            global_atomic_umax v5, v7, s[26:27] offset:64
            s_cmp_lg_u32 s2, 0
            s_cbranch_scc1 L_exit
            s_cmp_lg_u32 s3, 4
            s_cbranch_scc1 L_exit
            s_sub_u32 s70, s70, s66
            s_sub_u32 s68, s68, s64
            v_mov_b32 v6, s70
            v_mov_b32 v7, s68
            global_store_dwordx2 v4, v[6:7], s[26:27] offset:8
            """)
        if self.stamps:
            A(f"""
            s_mov_b64 exec, -1
            s_waitcnt lgkmcnt(0)
            s_memrealtime s[94:95]
            s_lshl_b32 s44, s2, 4
            s_add_u32 s44, s44, s3
            s_lshl_b32 s44, s44, 7
            s_add_u32 s44, s44, {STAMP_OFF}
            s_add_u32 s28, s28, s44
            s_addc_u32 s29, s29, 0
            v_mov_b32 v4, 0
            s_waitcnt lgkmcnt(0)
            """)
            for i in range(32):
                A(f"v_writelane_b32 v6, s{64+i}, {i}")
            A("""
            v_lshlrev_b32 v4, 2, v0
            s_mov_b32 exec_hi, 0
            global_store_dword v4, v6, s[28:29]
            """)
        A("L_exit:")
        A("s_endpgm")
        A("L_code_end:")
        self.L += ['.section .rodata,"a"', ".p2align 6", f".amdhsa_kernel {NAME}",
                   "  .amdhsa_next_free_vgpr 128", "  .amdhsa_next_free_sgpr 96", "  .amdhsa_accum_offset 128",
                   "  .amdhsa_group_segment_fixed_size 0", "  .amdhsa_kernarg_size 104", "  .amdhsa_user_sgpr_count 2",
                   "  .amdhsa_user_sgpr_kernarg_segment_ptr 1", "  .amdhsa_system_sgpr_workgroup_id_x 1",
                   ".end_amdhsa_kernel"]
        out = []
        for line in self.L:
            if line.rstrip().endswith(" sc1"):
                pol = self.o.get("ldpol", "sc1") if "global_load" in line else self.o.get("stpol", "sc1")
                line = line.rstrip()[:-3] + pol.replace("_", " ")
            line = line.replace("SMALLPOL", self.o.get("smallpol", ""))
            if self.o.get("kvpol") == "def" and "offen nt" in line: line = line.replace("offen nt", "offen")
            out.append(line)
        return "\n".join(out) + "\n"

    def gen_S(self):
        A = self.A
        D = self.depth
        A(f"""
        s_setprio {self.o.get('prioS','2')}
        s_sub_u32 s34, s3, 8
        s_mul_i32 s44, s32, {144*8192}
        s_lshl_b32 s45, s30, 9
        s_add_u32 s44, s44, s45
        s_lshl_b32 s45, s33, 7
        s_add_u32 s44, s44, s45
        s_add_u32 s40, s10, s44
        s_addc_u32 s41, s11, 0
        s_mov_b32 s42, {143*8192+128}
        v_lshrrev_b32 v2, 3, v0
        v_bfe_u32 v3, v0, 4, 2
        v_lshlrev_b32 v3, 1, v3
        v_and_b32 v4, 7, v0
        v_xor_b32 v3, v3, v4
        v_lshlrev_b32 v3, 4, v3
        v_lshl_add_u32 v2, v2, 13, v3
        s_lshl_b32 s44, s34, 10
        s_add_u32 m0, s44, {WQ}
        s_lshl_b32 s44, s34, 16
        {'s_branch L_wqdone' if self.o.get('nowq') else ''}
        L_wqloop:
        buffer_load_dwordx4 v2, s[40:43], s44 offen nt lds
        s_add_u32 m0, m0, 0x2000
        s_add_u32 s44, s44, 0x80000
        s_cmp_lt_u32 s44, {18*65536}
        s_cbranch_scc1 L_wqloop
        L_wqdone:
        s_lshl_b32 s44, s32, 4
        s_add_u32 s44, s44, s30
        s_lshl_b32 s44, s44, 21
        s_lshl_b32 s45, s33, 17
        s_add_u32 s44, s44, s45
        s_add_u32 s44, s44, {6144*256}
        s_add_u32 s36, s6, s44
        s_addc_u32 s37, s7, 0
        s_mov_b32 s38, 0x20000
        s_lshl_b32 s45, s34, 14
        s_add_u32 s44, s44, s45
        s_add_u32 s40, s8, s44
        s_addc_u32 s41, s9, 0
        s_movk_i32 s42, 0x4000
        s_mul_i32 s51, s2, 5
        s_add_u32 s51, s51, s31
        v_lshrrev_b32 v2, 4, v0
        v_lshlrev_b32 v1, 4, v0
        v_lshlrev_b32 v3, 6, v2
        v_xor_b32 v3, v1, v3
        v_mov_b32 v5, {F_T}
        v_mov_b32 v6, 1
        s_mov_b32 s50, s34
        """)
        self.stamp(1)
        A(f"""
        L_kloop:
        s_and_b32 s44, s50, 7
        s_lshr_b32 s45, s50, 3
        s_mul_i32 s46, s44, 3
        s_add_u32 s46, s46, s51
        s_add_u32 s46, s46, s45
        s_and_b32 s46, s46, 15
        s_lshl_b32 s44, s44, 4
        s_add_u32 s46, s46, s44
        s_lshl_b32 s46, s46, 10
        s_add_u32 s44, s44, s45
        s_lshl_b32 m0, s44, 10
        s_and_b32 s47, s45, 3
        s_lshl_b32 s47, s47, 4
        v_xor_b32 v4, s47, v3
        s_waitcnt vmcnt({D-1})
        buffer_load_dwordx4 v4, s[36:39], s46 offen nt lds
        s_cmp_lt_u32 s50, {8*(D-2)}
        s_cbranch_scc0 L_kdyn
        s_add_u32 s50, s50, 8
        s_branch L_kloop
        L_kdyn:
        s_cmp_lt_u32 s50, {8*(D-1)}
        s_cbranch_scc0 L_kdyn2
        s_add_u32 s50, s50, 8
        s_mov_b64 exec, 1
        ds_add_rtn_u32 v7, v5, v6
        s_mov_b64 exec, -1
        s_branch L_kloop
        L_kdyn2:
        s_waitcnt lgkmcnt(0)
        v_readfirstlane_b32 s49, v7
        s_mov_b64 exec, 1
        ds_add_rtn_u32 v7, v5, v6
        s_cmp_lt_u32 s50, {8*D}
        s_cbranch_scc0 L_knosig
        ds_add_u32 v5, v6 offset:{(F_WQ-F_T) & 0xffff}
        L_knosig:
        s_mov_b64 exec, -1
        s_add_u32 s50, s49, {8*D}
        s_cmp_lt_u32 s50, 128
        s_cbranch_scc1 L_kloop
        s_mul_i32 s46, s34, 3
        s_add_u32 s46, s46, s51
        s_and_b32 s46, s46, 15
        s_lshl_b32 s46, s46, 10
        s_movk_i32 s48, 0x400
        s_movk_i32 s49, 0x3fff
        s_waitcnt lgkmcnt(0)
        """)
        self.stamp(2)
        VB = 64
        DV = int(self.o.get("depthv", D))
        for n in range(16):
            if n <= D - 1 or n < int(self.o.get("vpaced", 16)):
                A(f"s_waitcnt vmcnt({(D if n <= D - 1 else DV)-1})")
            if n == D - 1:
                self.lds_signal(F_K, 4)
            A(f"""
            buffer_load_dwordx4 v[{VB+4*n}:{VB+4*n+3}], v1, s[40:43], s46 offen nt
            s_add_u32 s46, s46, s48
            s_and_b32 s46, s46, s49
            """)
        self.lds_signal(F_VI, 4)
        self.stamp(3)
        A(f"""
        v_and_b32 v4, 1, v0
        v_cmp_eq_u32 vcc, 1, v4
        v_mov_b32 v5, 0xffff
        v_mov_b32 v6, 0xffff0000
        v_bfe_u32 v4, v0, 1, 2
        v_cndmask_b32 v5, v5, v6, vcc
        """)
        for i in range(4):
            A(f"""
            v_cmp_eq_u32 vcc, {i}, v4
            s_nop 1
            v_cndmask_b32 v{8+i}, 0, v5, vcc
            """)
        A(f"""
        v_bfe_u32 v4, v0, 3, 1
        v_lshlrev_b32 v4, 11, v4
        v_lshl_add_u32 v4, v2, 6, v4
        s_lshl_b32 s44, s34, 8
        s_add_u32 s44, s44, {PB}
        v_add_u32 v12, s44, v4
        v_mov_b32 v32, 0
        v_mov_b32 v33, 0
        v_mov_b32 v34, 0
        v_mov_b32 v35, 0
        """)
        A(f"""
        v_lshrrev_b32 v4, 5, v0
        v_bfe_u32 v5, v0, 3, 1
        v_lshl_add_u32 v4, v4, 1, v5
        v_lshlrev_b32 v4, 11, v4
        v_and_b32 v5, 7, v0
        v_lshl_add_u32 v4, v5, 6, v4
        v_bfe_u32 v5, v0, 4, 1
        v_lshl_add_u32 v4, v5, 5, v4
        s_lshl_b32 s44, s32, 4
        s_add_u32 s44, s44, s30
        s_lshl_b32 s44, s44, 13
        s_lshl_b32 s45, s33, 9
        s_add_u32 s44, s44, s45
        s_add_u32 s44, s44, {W_O}
        v_add_u32 v13, s44, v4
        v_lshlrev_b32 v14, 4, v0
        v_add_u32 v14, {OPART}, v14
        s_lshl_b32 s44, s34, 10
        v_add_u32 v15, s44, v14
        """)
        self.proj_setup(wexpr="s34", wadd=4)
        if not self.o.get('sonly'): self.lds_wait(F_P, 4, 4, sleep=1)
        self.stamp(4)
        A(f"""
        ds_read_b128 v[16:19], v12
        ds_read_b128 v[20:23], v12 offset:16
        ds_read_b128 v[24:27], v12 offset:32
        ds_read_b128 v[28:31], v12 offset:48
        """)
        self.read_tag(4)
        A("""
        v_mov_b32 v41, s60
        v_mov_b32 v43, s61
        v_mov_b32 v45, s60
        v_mov_b32 v47, s61
        """)
        for n in range(16):
            a = 36 if n % 2 == 0 else 4
            A(f"""
            v_and_b32 v{a}, v{16+n}, v8
            v_and_b32 v{a+1}, v{16+n}, v9
            v_and_b32 v{a+2}, v{16+n}, v10
            v_and_b32 v{a+3}, v{16+n}, v11
            s_waitcnt vmcnt({15-n})
            s_nop 0
            v_mfma_f32_16x16x32_bf16 v[32:35], v[{a}:{a+3}], v[{VB+4*n}:{VB+4*n+3}], v[32:35]
            """)
        self.stamp(9)
        A(f"""
        v_mov_b32 v4, {F_O}
        v_mov_b32 v5, 1
        s_nop 5
        ds_write_b128 v15, v[32:35]
        s_mov_b64 exec, 1
        ds_add_rtn_u32 v5, v4, v5
        s_mov_b64 exec, -1
        s_waitcnt lgkmcnt(0)
        v_readfirstlane_b32 s46, v5
        s_nop 0
        s_cmp_lg_u32 s46, 7
        s_cbranch_scc1 L_S_notlast
        ds_read_b128 v[64:67], v14 offset:0
        ds_read_b128 v[68:71], v14 offset:1024
        ds_read_b128 v[72:75], v14 offset:2048
        ds_read_b128 v[76:79], v14 offset:3072
        ds_read_b128 v[80:83], v14 offset:4096
        ds_read_b128 v[84:87], v14 offset:5120
        ds_read_b128 v[88:91], v14 offset:6144
        ds_read_b128 v[92:95], v14 offset:7168
        s_waitcnt lgkmcnt(6)
        v_pk_add_f32 v[64:65], v[64:65], v[68:69]
        v_pk_add_f32 v[66:67], v[66:67], v[70:71]
        s_waitcnt lgkmcnt(4)
        v_pk_add_f32 v[72:73], v[72:73], v[76:77]
        v_pk_add_f32 v[74:75], v[74:75], v[78:79]
        v_pk_add_f32 v[64:65], v[64:65], v[72:73]
        v_pk_add_f32 v[66:67], v[66:67], v[74:75]
        s_waitcnt lgkmcnt(2)
        v_pk_add_f32 v[80:81], v[80:81], v[84:85]
        v_pk_add_f32 v[82:83], v[82:83], v[86:87]
        s_waitcnt lgkmcnt(0)
        v_pk_add_f32 v[88:89], v[88:89], v[92:93]
        v_pk_add_f32 v[90:91], v[90:91], v[94:95]
        v_pk_add_f32 v[80:81], v[80:81], v[88:89]
        v_pk_add_f32 v[82:83], v[82:83], v[90:91]
        v_add_f32 v40, v64, v80
        v_add_f32 v42, v65, v81
        v_add_f32 v44, v66, v82
        v_add_f32 v46, v67, v83
        global_store_dwordx4 v13, v[40:43], s[28:29] sc1
        global_store_dwordx4 v13, v[44:47], s[28:29] offset:16 sc1
        s_mov_b64 exec, 1
        ds_write_b32 v4, v5 offset:{F_OP-F_O}
        s_mov_b64 exec, -1
        L_S_notlast:
        """)
        self.stamp(5)
        A("s_branch L_proj")

    def proj_setup(self, wexpr, wadd):
        A = self.A
        A(f"""
        s_add_u32 s56, {wexpr}, {wadd}
        s_mul_i32 s56, s56, 3
        v_lshrrev_b32 v4, 4, v0
        v_bfe_u32 v5, v0, 2, 2
        v_lshlrev_b32 v6, 4, v4
        v_add_u32 v7, {OB}, v6
        v_add_u32 v6, {ZERO}, v6
        """)
        for d in range(3):
            A(f"""
            v_cmp_eq_u32 vcc, {d}, v5
            s_nop 1
            v_cndmask_b32 v{48+d}, v6, v7, vcc
            """)
        A(f"""
        v_lshl_add_u32 v6, v4, 2, v5
        v_and_b32 v7, 3, v0
        v_lshlrev_b32 v7, 3, v7
        v_mul_u32_u24 v55, {WO_PITCH}, v6
        v_add_u32 v55, v55, v7
        v_lshl_add_u32 v56, v6, 7, v7
        v_add_u32 v56, {WO_LEFT}, v56
        v_bfe_u32 v6, v6, 1, 2
        v_lshl_add_u32 v56, v6, 5, v56
        """)
        for d in range(3):
            A(f"""
            s_add_u32 s44, s56, {d}
            s_lshl_b32 s45, s44, 5
            v_add_u32 v6, s45, v55
            s_and_b32 s45, s45, 0x60
            v_xor_b32 v7, s45, v56
            s_cmp_lt_u32 s44, 32
            s_cselect_b64 vcc, -1, 0
            s_movk_i32 s{57+d}, {16*128}
            s_cmov_b32 s{57+d}, {16*WO_PITCH}
            v_cndmask_b32 v{51+d}, v7, v6, vcc
            """)
        A(f"""
        s_mul_i32 s44, s32, 36
        s_add_u32 s44, s44, s56
        s_lshl_b32 s44, s44, 13
        s_lshl_b32 s45, s30, 2
        s_add_u32 s45, s45, s33
        s_lshl_b32 s45, s45, 7
        s_add_u32 s44, s44, s45
        s_add_u32 s44, s44, {W_S}
        v_lshlrev_b32 v6, 13, v5
        v_lshl_add_u32 v6, v4, 5, v6
        v_and_b32 v7, 1, v0
        v_lshl_add_u32 v6, v7, 4, v6
        v_add_u32 v54, s44, v6
        v_cmp_eq_u32 s[54:55], 1, v7
        v_and_b32 v6, 14, v0
        v_cmp_gt_u32 s[52:53], 12, v6
        v_and_b32 v6, 2, v0
        v_cmp_eq_u32 vcc, 0, v6
        s_and_b64 s[52:53], s[52:53], vcc
        """)

    def gen_proj(self):
        A = self.A
        A("L_proj:")
        if self.o.get('notail'): A("s_branch L_end")
        self.lds_wait(F_WO, 4, 4)
        self.stamp(6)
        for d in range(3):
            A(f"v_mov_b32 v4, v{51+d}")
            for k in range(2):
                r = 64 + (d * 2 + k) * 4
                A(f"""
                ds_read_b64_tr_b16 v[{r}:{r+1}], v4
                v_add_u32 v4, s{57+d}, v4
                ds_read_b64_tr_b16 v[{r+2}:{r+3}], v4
                """)
                if k == 0: A(f"v_add_u32 v4, s{57+d}, v4")
        A("""
        v_mov_b32 v32, 0
        v_mov_b32 v33, 0
        v_mov_b32 v34, 0
        v_mov_b32 v35, 0
        v_mov_b32 v41, s60
        v_mov_b32 v43, s61
        """)
        self.lds_wait(F_OB, 1, 4)
        self.stamp(7)
        for d in range(3):
            for k in range(2):
                r = 96 + (d * 2 + k) * 4
                A(f"ds_read_b128 v[{r}:{r+3}], v{48+d} offset:{64*k}")
        for i in range(6):
            A(f"""
            s_waitcnt lgkmcnt({5-i})
            v_mfma_f32_16x16x32_bf16 v[32:35], v[{64+4*i}:{67+4*i}], v[{96+4*i}:{99+4*i}], v[32:35]
            """)
        A("""
        s_nop 7
        v_cndmask_b32 v40, v32, v34, s[54:55]
        v_cndmask_b32 v42, v33, v35, s[54:55]
        s_mov_b64 exec, s[52:53]
        global_store_dwordx4 v54, v[40:43], s[28:29] sc1
        s_mov_b64 exec, -1
        """)
        self.lds_signal(F_PJ, 4)
        self.stamp(8)
        A("s_branch L_end")

    def gen_LN(self):
        A = self.A
        A("L_ln:")
        A("""
        v_add_f32 v11, v2, v3
        v_add_f32 v12, v4, v5
        v_add_f32 v13, v6, v7
        v_add_f32 v11, v11, v12
        v_add_f32 v12, v8, v9
        v_add_f32 v13, v13, v10
        v_add_f32 v11, v11, v12
        v_add_f32 v11, v11, v13
        """)
        self.wave_sum(11, 44)
        A("""
        v_mov_b32 v11, 0x3ae38e39
        v_mul_f32 v11, s44, v11
        v_mov_b32 v12, 0
        """)
        for i in range(2, 11):
            A(f"v_sub_f32 v13, v{i}, v11\nv_fmac_f32 v12, v13, v13")
        self.wave_sum(12, 45)
        self.rb(11)
        A("""
        v_mov_b32 v12, 0x3ae38e39
        v_mul_f32 v12, s45, v12
        """)
        self.rb(12)
        A("v_add_f32 v12, 0x3727c5ac, v12")
        self.rb(12)
        A("v_sqrt_f32 v12, v12\ns_nop 0")
        self.rb(12)
        A("v_rcp_f32 v12, v12")
        for i in range(2, 11): A(f"v_sub_f32 v{i}, v{i}, v11")
        for i in range(2, 10, 2): self.rb2(i, i + 1)
        self.rb(10)
        for i in range(2, 11): A(f"v_mul_f32 v{i}, v{i}, v12")
        for i in range(2, 10, 2): self.rb2(i, i + 1)
        self.rb(10)
        A("s_setpc_b64 s[50:51]")

    def unpack9(self, src, s9):
        A = self.A
        for i in range(4):
            A(f"v_lshlrev_b32 v{2+2*i}, 16, v{src+i}\nv_and_b32 v{3+2*i}, 0xffff0000, v{src+i}")
        A(f"v_lshlrev_b32 v10, 16, v{s9}")

    def gen_A(self):
        A = self.A
        A("s_waitcnt vmcnt(0)")
        self.stamp(1)
        self.unpack9(16, 20)
        A("s_call_b64 s[50:51], L_ln")
        A(f"""
        v_cvt_pk_bf16_f32 v16, v2, v3
        v_cvt_pk_bf16_f32 v17, v4, v5
        v_cvt_pk_bf16_f32 v18, v6, v7
        v_cvt_pk_bf16_f32 v19, v8, v9
        v_lshrrev_b32 v20, 16, v10
        s_mul_i32 s44, s3, 1152
        s_add_u32 s44, s44, {XN}
        v_add_u32 v11, s44, v1
        v_add_u32 v12, s44, v14
        ds_write_b128 v11, v[16:19]
        ds_write_b16 v12, v20 offset:1024
        s_waitcnt lgkmcnt(0)
        s_add_u32 s60, s60, 0x7f4a7c15
        s_addc_u32 s61, s61, 0x9e3779b9
        s_cmp_lg_u32 s3, 0
        s_cbranch_scc1 L_A_notag
        v_mov_b32 v11, {TAG}
        v_mov_b32 v12, s60
        v_mov_b32 v13, s61
        ds_write_b64 v11, v[12:13]
        L_A_notag:
        """)
        self.lds_signal(F_X, 4)
        self.stamp(2)
        A("""
        s_cmp_lg_u32 s3, 0
        s_cbranch_scc1 L_A_poll
        """)
        self.lds_wait(F_X, 4, 4)
        A(f"""
        v_lshrrev_b32 v2, 4, v0
        v_bfe_u32 v3, v0, 2, 2
        v_lshl_add_u32 v4, v2, 2, v3
        v_bfe_u32 v5, v4, 1, 2
        v_lshlrev_b32 v5, 5, v5
        v_lshl_add_u32 v5, v4, 7, v5
        v_and_b32 v6, 3, v0
        v_lshl_add_u32 v5, v6, 3, v5
        v_add_u32 v8, {WQ}, v5
        v_xor_b32 v9, 32, v8
        v_xor_b32 v10, 64, v8
        v_xor_b32 v11, 0x60, v8
        v_mul_u32_u24 v12, 1152, v6
        v_lshl_add_u32 v12, v2, 3, v12
        s_mul_i32 s44, s32, 288
        s_add_u32 s44, s44, {XN}
        v_add_u32 v12, s44, v12
        """)
        for k in range(4):
            A(f"ds_read2_b64 v[{16+4*k}:{19+4*k}], v12 offset0:{8*k} offset1:{8*k+4}")
        A("ds_read_b64 v[32:33], v12 offset:256")
        for i in range(36, 52): A(f"v_mov_b32 v{i}, 0")
        A(f"""
        v_cmp_eq_u32 s[52:53], 1, v3
        v_cmp_eq_u32 s[54:55], 2, v3
        v_cmp_eq_u32 s[56:57], 3, v3
        s_lshl_b32 s44, s30, 15
        s_lshl_b32 s45, s32, 11
        s_add_u32 s44, s44, s45
        s_lshl_b32 s45, s33, 9
        s_add_u32 s44, s44, s45
        s_add_u32 s44, s44, {W_Q}
        v_lshlrev_b32 v13, 13, v6
        v_lshl_add_u32 v13, v3, 7, v13
        v_lshl_add_u32 v13, v2, 5, v13
        v_add_u32 v13, s44, v13
        v_mov_b32 v5, s60
        v_mov_b32 v7, s61
        v_mov_b32 v53, s60
        v_mov_b32 v55, s61
        """)
        self.lds_wait(F_WQ, 8, 14)
        self.stamp(3)
        reads = []
        for ct in range(4):
            base = 56 + 18 * ct
            for k in range(4):
                reads.append(f"ds_read_b64_tr_b16 v[{base+4*k}:{base+4*k+1}], v{8+ct} offset:{4096*k}")
                reads.append(f"ds_read_b64_tr_b16 v[{base+4*k+2}:{base+4*k+3}], v{8+ct} offset:{4096*k+2048}")
            reads.append(f"ds_read_b64_tr_b16 v[{base+16}:{base+17}], v{8+ct} offset:16384")
        A("s_waitcnt lgkmcnt(0)")
        pos = 0
        for ct in range(3):
            upto = 9 * (ct + 1) + 5
            while pos < upto: A(reads[pos]); pos += 1
            self._qmf(ct, 5)
        while pos < 36: A(reads[pos]); pos += 1
        self._qmf(3, 0)
        A("""
        s_nop 7
        """)
        for i, dst in enumerate([4, 6, 52, 54]):
            A(f"""
            v_cndmask_b32 v{dst}, v{36+i}, v{40+i}, s[52:53]
            v_cndmask_b32 v{dst}, v{dst}, v{44+i}, s[54:55]
            v_cndmask_b32 v{dst}, v{dst}, v{48+i}, s[56:57]
            """)
        A("""
        global_store_dwordx4 v13, v[4:7], s[28:29] sc1
        global_store_dwordx4 v13, v[52:55], s[28:29] offset:16 sc1
        """)
        self.stamp(4)
        self.lds_signal(F_QP, 8)
        A("L_A_poll:")
        self.lds_wait(F_QP, 1, 8, sleep=2)
        A(f"""
        s_lshl_b32 s44, s30, 15
        s_lshl_b32 s45, s32, 13
        s_add_u32 s44, s44, s45
        s_lshl_b32 s45, s3, 9
        s_add_u32 s44, s44, s45
        s_add_u32 s44, s44, {W_Q}
        v_lshrrev_b32 v2, 5, v0
        v_and_b32 v3, 31, v0
        v_lshlrev_b32 v4, 12, v2
        v_lshl_add_u32 v4, v3, 4, v4
        v_add_u32 v4, s44, v4
        s_lshl_b32 s44, s3, 7
        s_add_u32 s44, s44, {QS}
        v_lshlrev_b32 v5, 2, v3
        v_lshl_add_u32 v5, v2, 1, v5
        v_add_u32 v5, s44, v5
        s_lshl_b32 s44, s30, 15
        s_lshl_b32 s45, s32, 13
        s_add_u32 s44, s44, s45
        s_lshl_b32 s45, s3, 9
        s_add_u32 s44, s44, s45
        s_add_u32 s44, s44, {W_Q}
        s_add_u32 s48, s28, s44
        s_addc_u32 s49, s29, 0
        {'s_branch L_qskip' if self.o.get('noq') else ''}
        L_qsp:
        s_load_dwordx2 s[52:53], s[48:49], 0x1f8 glc
        s_load_dwordx2 s[54:55], s[48:49], 0x9f8 glc
        s_load_dwordx2 s[56:57], s[48:49], 0x11f8 glc
        s_load_dwordx2 s[58:59], s[48:49], 0x19f8 glc
        s_add_u32 s62, s62, 16
        s_cmp_gt_u32 s62, 0x400000
        s_cbranch_scc1 L_end
        s_sleep {self.o.get('qsleep','0')}
        s_waitcnt lgkmcnt(0)
        s_xor_b32 s53, s53, s61
        s_xor_b32 s55, s55, s61
        s_xor_b32 s57, s57, s61
        s_xor_b32 s59, s59, s61
        s_or_b32 s53, s53, s55
        s_or_b32 s57, s57, s59
        s_or_b32 s53, s53, s57
        s_cbranch_scc1 L_qsp
        L_qpoll:
        global_load_dwordx4 v[8:11], v4, s[28:29] sc1
        global_load_dwordx4 v[12:15], v4, s[28:29] offset:2048 sc1
        s_add_u32 s62, s62, 64
        s_cmp_gt_u32 s62, 0x400000
        s_cbranch_scc1 L_end
        s_waitcnt vmcnt(0)
        v_xor_b32 v6, s60, v9
        v_xor_b32 v7, s61, v11
        v_xor_b32 v16, s60, v13
        v_xor_b32 v17, s61, v15
        v_or3_b32 v6, v6, v7, v16
        v_or_b32 v6, v6, v17
        v_cmp_ne_u32 vcc, 0, v6
        s_cbranch_vccnz L_qpoll
        L_qskip:
        v_add_f32 v8, v8, v12
        v_add_f32 v10, v10, v14
        s_nop 1
        v_permlane32_swap_b32 v8, v10
        v_add_f32 v8, v8, v10
        v_cvt_pk_bf16_f32 v8, v8, v8
        ds_write_b16 v5, v8
        """)
        self.lds_signal(F_Q, 6)
        self.stamp(5)
        A(f"""
        v_lshrrev_b32 v2, 4, v0
        v_and_b32 v3, 15, v0
        v_bfe_u32 v4, v0, 3, 1
        v_lshlrev_b32 v4, 8, v4
        v_lshl_add_u32 v4, v2, 4, v4
        v_add_u32 v4, {QS}, v4
        v_and_b32 v5, 3, v0
        v_bfe_u32 v6, v0, 2, 2
        v_lshl_add_u32 v5, v5, 2, v6
        v_lshlrev_b32 v5, 8, v5
        v_xor_b32 v6, v2, v3
        v_lshl_add_u32 v5, v6, 4, v5
        s_lshl_b32 s44, s3, 15
        v_add_u32 v8, s44, v5
        v_xor_b32 v9, 64, v8
        v_xor_b32 v10, 0x80, v8
        v_xor_b32 v11, 0xc0, v8
        """)
        self.lds_wait(F_Q, 4, 6)
        for t in range(4):
            A(f"ds_read_b128 v[{16+4*t}:{19+4*t}], v4 offset:{64*t}")
        self.lds_wait(F_K, 8, 6, sleep=1)
        self.stamp(6)
        def kread(tau):
            for t in range(4):
                r = 64 + ((tau % 4) * 4 + t) * 4
                A(f"ds_read_b128 v[{r}:{r+3}], v{8+t} offset:{4096*tau}")
        for tau in range(2): kread(tau)
        for tau in range(8):
            if tau + 2 < 8: kread(tau + 2)
            out = min(2, 7 - tau) * 4
            for t in range(4):
                r = 64 + ((tau % 4) * 4 + t) * 4
                A(f"s_waitcnt lgkmcnt({min(15, out + 3 - t)})")
                c = "0" if t == 0 else f"v[{32+4*tau}:{35+4*tau}]"
                A(f"v_mfma_f32_16x16x32_bf16 v[{32+4*tau}:{35+4*tau}], v[{r}:{r+3}], v[{16+4*t}:{19+4*t}], {c}")
        A("s_nop 7")
        A("s_mov_b32 s44, 0x02020202")
        for tau in range(1, 8):
            A(f"""
            s_mov_b32 exec_lo, s44
            s_mov_b32 exec_hi, s44
            v_mov_b32 v32, v{32+4*tau}
            v_mov_b32 v33, v{33+4*tau}
            v_mov_b32 v34, v{34+4*tau}
            v_mov_b32 v35, v{35+4*tau}
            s_lshl_b32 s44, s44, 1
            """)
        A("s_mov_b64 exec, -1")
        A("v_mov_b32 v2, 0x3db504f3")
        for i in (32, 34):
            self.rb2(i, i + 1)
            A(f"v_mul_f32 v{i}, v{i}, v2\nv_mul_f32 v{i+1}, v{i+1}, v2")
            self.rb2(i, i + 1)
        mx = "v_max_f32_dpp v3, v3, v3"
        A(f"""
        v_max_f32 v3, v32, v33
        v_max3_f32 v3, v3, v34, v35
        v_bfe_u32 v5, v0, 3, 1
        v_lshlrev_b32 v5, 4, v5
        {mx} quad_perm:[1,0,3,2] row_mask:0xf bank_mask:0xf
        v_add_u32 v5, {MA}, v5
        s_lshl_b32 s44, s3, 2
        {mx} quad_perm:[2,3,0,1] row_mask:0xf bank_mask:0xf
        v_add_u32 v6, s44, v5
        s_nop 0
        {mx} row_half_mirror row_mask:0xf bank_mask:0xf
        s_nop 0
        v_mov_b32 v4, v3
        s_nop 1
        v_permlane32_swap_b32 v3, v4
        v_max_f32 v3, v3, v4
        v_mov_b32 v4, v3
        s_nop 1
        v_permlane16_swap_b32 v3, v4
        v_max_f32 v3, v3, v4
        ds_write_b32 v6, v3
        """)
        self.lds_signal(F_M, 8)
        A(f"""
        v_bfe_u32 v7, v0, 3, 1
        v_lshlrev_b32 v7, 11, v7
        v_lshrrev_b32 v8, 4, v0
        v_lshl_add_u32 v7, v8, 6, v7
        v_bfe_u32 v8, v0, 2, 1
        v_lshl_add_u32 v7, v8, 8, v7
        v_and_b32 v8, 3, v0
        v_lshl_add_u32 v7, v8, 4, v7
        s_lshl_b32 s44, s3, 9
        s_add_u32 s44, s44, {PB}
        v_add_u32 v14, s44, v7
        """)
        self.lds_wait(F_M, 4, 8)
        sm = "v_add_f32_dpp v12, v12, v12"
        A(f"""
        ds_read_b128 v[8:11], v5
        v_mov_b32 v2, 0x3fb8aa3b
        s_waitcnt lgkmcnt(0)
        v_max_f32 v3, v8, v9
        v_max3_f32 v3, v3, v10, v11
        v_mul_f32 v4, v3, v2
        v_fma_f32 v32, v32, v2, -v4
        v_fma_f32 v33, v33, v2, -v4
        v_fma_f32 v34, v34, v2, -v4
        v_fma_f32 v35, v35, v2, -v4
        v_exp_f32 v32, v32
        v_exp_f32 v33, v33
        v_exp_f32 v34, v34
        v_exp_f32 v35, v35
        v_add_f32 v12, v32, v33
        v_cvt_pk_bf16_f32 v36, v32, v32
        v_add_f32 v13, v34, v35
        v_cvt_pk_bf16_f32 v37, v33, v33
        v_add_f32 v12, v12, v13
        v_cvt_pk_bf16_f32 v38, v34, v34
        v_cvt_pk_bf16_f32 v39, v35, v35
        {sm} quad_perm:[1,0,3,2] row_mask:0xf bank_mask:0xf
        ds_write_b128 v14, v[36:39]
        s_nop 0
        {sm} quad_perm:[2,3,0,1] row_mask:0xf bank_mask:0xf
        s_nop 1
        {sm} row_half_mirror row_mask:0xf bank_mask:0xf
        s_nop 0
        v_mov_b32 v13, v12
        s_nop 1
        v_permlane32_swap_b32 v12, v13
        v_add_f32 v12, v12, v13
        v_mov_b32 v13, v12
        s_nop 1
        v_permlane16_swap_b32 v12, v13
        v_add_f32 v12, v12, v13
        ds_write_b32 v6, v12 offset:{LA-MA}
        """)
        self.lds_signal(F_P, 6, rtn=True)
        A(f"""
        s_waitcnt lgkmcnt(0)
        v_readfirstlane_b32 s46, v7
        s_nop 0
        s_cmp_lg_u32 s46, 3
        s_cbranch_scc1 L_A_noml
        ds_read_b128 v[12:15], v5 offset:{LA-MA}
        v_mov_b32 v8, v3
        v_mov_b32 v9, s60
        v_mov_b32 v11, s61
        s_lshl_b32 s44, s32, 4
        s_add_u32 s44, s44, s30
        s_lshl_b32 s44, s44, 7
        s_lshl_b32 s45, s33, 4
        s_add_u32 s44, s44, s45
        s_add_u32 s44, s44, {W_ML}
        v_bfe_u32 v5, v0, 3, 1
        v_lshlrev_b32 v5, 6, v5
        v_add_u32 v5, s44, v5
        s_mov_b64 exec, 0x101
        s_waitcnt lgkmcnt(0)
        v_add_f32 v12, v12, v13
        v_add_f32 v14, v14, v15
        v_add_f32 v10, v12, v14
        global_store_dwordx4 v5, v[8:11], s[28:29] sc1
        s_mov_b64 exec, -1
        L_A_noml:
        """)
        self.stamp(9)
        A(f"""
        s_lshl_b32 s44, s30, 8
        s_lshl_b32 s45, s33, 6
        s_add_u32 s44, s44, s45
        s_lshl_b32 s45, s3, 4
        s_add_u32 s44, s44, s45
        s_mul_i32 s44, s44, 1152
        s_add_u32 s40, s12, s44
        s_addc_u32 s41, s13, 0
        s_movk_i32 s42, {16*1152}
        v_lshlrev_b32 v1, 4, v0
        v_lshrrev_b32 v2, 3, v0
        v_bfe_u32 v3, v0, 4, 2
        v_lshlrev_b32 v3, 1, v3
        v_and_b32 v4, 7, v0
        v_xor_b32 v3, v3, v4
        v_lshlrev_b32 v3, 4, v3
        v_mul_u32_u24 v2, 1152, v2
        v_add_u32 v2, v2, v3
        v_add_u32 v2, 0x400, v2
        """)
        self.proj_setup(wexpr="s3", wadd=0)
        self.lds_wait(F_P, 4, 6)
        if self.o.get('wolast'): self.lds_wait(F_VI, 8, 6, sleep=1)
        self.stamp(10)
        wo_pol = self.o.get("wo", "nt")
        A(f"""
        {'s_branch L_wodone' if self.o.get('nowo') else ''}
        s_mul_i32 m0, s3, {16*WO_PITCH}
        s_mov_b32 s44, 0
        L_woloop:
        {'s_waitcnt vmcnt(%d)' % (int(self.o.get('wopace'))-1) if self.o.get('wopace') else ''}
        buffer_load_dwordx4 v1, s[40:43], s44 offen {wo_pol} lds
        s_add_u32 m0, m0, {WO_PITCH}
        s_add_u32 s44, s44, 1152
        s_cmp_lt_u32 s44, {16*1152}
        s_cbranch_scc1 L_woloop
        s_lshl_b32 s44, s3, 11
        s_add_u32 m0, s44, {WO_LEFT}
        s_movk_i32 s44, {8*1152}
        buffer_load_dwordx4 v2, s[40:43], 0 offen {wo_pol} lds
        s_add_u32 m0, m0, 0x400
        s_nop 0
        buffer_load_dwordx4 v2, s[40:43], s44 offen {wo_pol} lds
        L_wodone:
        s_waitcnt vmcnt(0)
        """)
        self.lds_signal(F_WO, 6)
        self.gen_proj()

    def _qmf(self, ct, outstanding):
        A = self.A
        base = 56 + 18 * ct
        d = f"v[{36+4*ct}:{39+4*ct}]"
        A(f"s_waitcnt lgkmcnt({outstanding})")
        for k in range(4):
            A(f"v_mfma_f32_16x16x32_bf16 {d}, v[{base+4*k}:{base+4*k+3}], v[{16+4*k}:{19+4*k}], {d}")
        A("s_nop 5")
        A(f"v_mfma_f32_16x16x16_bf16 {d}, v[{base+16}:{base+17}], v[32:33], {d}")

    def gen_M(self):
        A = self.A
        A(f"""
        L_M:
        {'s_branch L_end' if self.o.get('nom') else ''}
        s_sub_u32 s34, s3, 4
        """)
        A(f"""
        s_cmp_lt_u32 s2, 144
        s_cbranch_scc1 L_M_mlp
        s_cmp_eq_u32 s34, 1
        s_cbranch_scc0 L_end
        """)
        self.lds_wait(F_X, 4, 4, sleep=1)
        self.read_tag(4)
        A(f"""
        s_branch L_M1
        L_M_mlp:
        s_mul_i32 s58, s2, 1821
        s_lshr_b32 s58, s58, 16
        s_mul_i32 s59, s58, 36
        s_sub_u32 s59, s2, s59
        s_lshl_b32 s44, s34, 6
        v_add_u32 v1, s44, v0
        v_lshlrev_b32 v14, 2, v1
        v_lshlrev_b32 v1, 4, v1
        v_add_u32 v15, 0x1000, v1
        v_add_u32 v14, 0x2000, v14
        """)
        self.lds_wait(F_X, 4, 4, sleep=1)
        for (p, r) in (("s[16:17]", 96), ("s[18:19]", 106), ("s[20:21]", 116)):
            A(f"""
            global_load_dwordx4 v[{r}:{r+3}], v1, {p} SMALLPOL
            global_load_dwordx4 v[{r+4}:{r+7}], v15, {p} SMALLPOL
            global_load_dword v{r+8}, v14, {p} SMALLPOL
            """)
        self.read_tag(4)
        A(f"""
        s_mul_i32 s44, s58, 1152
        s_add_u32 s44, s44, {XN}
        v_lshlrev_b32 v1, 4, v0
        v_lshlrev_b32 v14, 1, v0
        v_add_u32 v11, s44, v1
        v_add_u32 v12, s44, v14
        ds_read_b128 v[16:19], v11
        ds_read_u16 v20, v12 offset:1024
        s_waitcnt lgkmcnt(0)
        """)
        self.unpack9(16, 20)
        A("s_call_b64 s[50:51], L_ln")
        A(f"""
        v_lshlrev_b32 v11, 5, v0
        v_add_u32 v11, {HB}, v11
        v_lshlrev_b32 v12, 2, v0
        v_add_u32 v12, {HB}, v12
        ds_write_b128 v11, v[2:5]
        ds_write_b128 v11, v[6:9] offset:16
        ds_write_b32 v12, v10 offset:2048
        s_lshl_b32 s44, s59, 6
        s_add_u32 s44, s44, {HB}
        v_mov_b32 v1, s44
        s_waitcnt vmcnt(0)
        """)
        self.stamp(1)
        for (r, dst) in ((96, 32), (106, 50), (116, 68)):
            for i in range(9):
                A(f"v_lshlrev_b32 v{dst+2*i}, 16, v{r+i}\nv_and_b32 v{dst+2*i+1}, 0xffff0000, v{r+i}")
        import math, struct
        K0 = -2.0 * math.sqrt(2.0 / math.pi) * math.log2(math.e)
        K1 = K0 * 0.044715
        f2u = lambda f: struct.unpack("<I", struct.pack("<f", f))[0]
        A(f"""
        v_mov_b32 v2, {f2u(K0):#x}
        v_mov_b32 v3, {f2u(K1):#x}
        v_lshrrev_b32 v14, 4, v0
        s_lshl_b32 s44, s34, 4
        s_add_u32 s44, s44, {GP}
        v_lshlrev_b32 v14, 2, v14
        v_add_u32 v14, s44, v14
        s_mov_b32 s47, 0
        s_mov_b32 s48, 0x00010001
        s_mov_b32 s49, 0x00010001
        s_waitcnt lgkmcnt(0)
        ds_read_b32 v4, v1
        L_mlp:
        v_mov_b32 v6, 0
        v_mov_b32 v7, 0
        s_waitcnt lgkmcnt(0)
        """)
        for grp in range(3):
            ks = [3 * grp + j for j in range(3)]
            U = lambda j: f"v[{8+2*j}:{9+2*j}]"
            T = lambda j: f"v[{16+2*j}:{17+2*j}]"
            P = lambda base, k: f"v[{base+2*k}:{base+2*k+1}]"
            for j, k in enumerate(ks): A(f"v_pk_fma_f32 {U(j)}, {P(32,k)}, v[4:5], {P(50,k)} op_sel_hi:[1,0,1]")
            for j, k in enumerate(ks): A(f"v_pk_mul_f32 {T(j)}, {U(j)}, {U(j)}")
            for j, k in enumerate(ks): A(f"v_pk_fma_f32 {T(j)}, {T(j)}, v[2:3], v[2:3] op_sel:[0,1,0] op_sel_hi:[1,1,0]")
            for j, k in enumerate(ks): A(f"v_pk_mul_f32 {T(j)}, {T(j)}, {U(j)}")
            for j, k in enumerate(ks): A(f"v_exp_f32 v{16+2*j}, v{16+2*j}\nv_exp_f32 v{17+2*j}, v{17+2*j}")
            for j, k in enumerate(ks): A(f"v_pk_mul_f32 {U(j)}, {U(j)}, {P(68,k)}")
            for j, k in enumerate(ks): A(f"v_pk_add_f32 {T(j)}, {T(j)}, 1.0 op_sel_hi:[1,0]")
            for j, k in enumerate(ks): A(f"v_rcp_f32 v{16+2*j}, v{16+2*j}\nv_rcp_f32 v{17+2*j}, v{17+2*j}")
            if grp == 2:
                A("v_add_u32 v1, 4, v1\nds_read_b32 v4, v1")
            else:
                A("s_nop 0")
            for j, k in enumerate(ks): A(f"v_pk_fma_f32 v[6:7], {U(j)}, {T(j)}, v[6:7]")
        ins = "v_add_f32_dpp v6, v6, v6"
        A(f"""
        v_add_f32 v6, v6, v7
        s_nop 1
        {ins} quad_perm:[1,0,3,2] row_mask:0xf bank_mask:0xf
        s_nop 1
        {ins} quad_perm:[2,3,0,1] row_mask:0xf bank_mask:0xf
        s_nop 1
        {ins} row_half_mirror row_mask:0xf bank_mask:0xf
        s_nop 1
        {ins} row_mirror row_mask:0xf bank_mask:0xf
        s_mov_b64 exec, s[48:49]
        ds_write_b32 v14, v6
        s_mov_b64 exec, -1
        v_add_u32 v14, 64, v14
        s_add_u32 s47, s47, 1
        s_cmp_lt_u32 s47, {self.o.get('mlpn', 16)}
        s_cbranch_scc1 L_mlp
        s_waitcnt lgkmcnt(0)
        """)
        self.lds_signal(F_G, 8)
        self.stamp(2)
        A("""
        s_cmp_eq_u32 s34, 0
        s_cbranch_scc1 L_M0
        s_cmp_eq_u32 s34, 1
        s_cbranch_scc0 L_end
        L_M1:
        s_setprio 3
        """)
        A(f"""
        s_lshl_b32 s44, s32, 4
        s_add_u32 s44, s44, s30
        s_lshl_b32 s45, s44, 7
        s_lshr_b32 s46, s33, 1
        s_lshl_b32 s46, s46, 6
        s_add_u32 s45, s45, s46
        s_add_u32 s45, s45, {W_ML}
        v_lshrrev_b32 v2, 4, v0
        s_add_u32 s48, s28, s45
        s_addc_u32 s49, s29, 0
        s_lshl_b32 s44, s44, 13
        s_lshl_b32 s45, s33, 11
        s_add_u32 s44, s44, s45
        s_add_u32 s44, s44, {W_O}
        v_and_b32 v4, 15, v0
        v_lshlrev_b32 v5, 9, v2
        v_lshl_add_u32 v5, v4, 4, v5
        v_add_u32 v5, s44, v5
        """)
        A(f"""
        v_bfe_u32 v6, v0, 4, 1
        v_lshlrev_b32 v6, 5, v6
        v_bfe_u32 v7, v0, 1, 2
        v_lshl_add_u32 v6, v7, 3, v6
        v_bfe_u32 v7, v0, 3, 1
        v_lshl_add_u32 v6, v7, 2, v6
        v_and_b32 v7, 1, v0
        v_lshl_add_u32 v6, v7, 1, v6
        v_lshrrev_b32 v7, 5, v0
        v_add_u32 v6, v6, v7
        v_lshlrev_b32 v6, 1, v6
        v_add_u32 v6, {OB}, v6
        v_mov_b32 v20, {F_OB}
        v_mov_b32 v21, 1
        """)
        self.lds_wait(F_P, 4, 8, sleep=2)
        A(f"""
        {'s_branch L_end' if self.o.get('notail') else ''}
        L_mlpoll:
        s_load_dwordx16 s[4:19], s[48:49], 0 glc
        s_add_u32 s62, s62, 16
        s_cmp_gt_u32 s62, 0x400000
        s_cbranch_scc1 L_end
        s_sleep 2
        s_waitcnt lgkmcnt(0)
        s_mov_b32 s44, 0
        s_xor_b32 s45, s5, s60
        s_or_b32 s44, s44, s45
        s_xor_b32 s45, s7, s61
        s_or_b32 s44, s44, s45
        s_xor_b32 s45, s9, s60
        s_or_b32 s44, s44, s45
        s_xor_b32 s45, s11, s61
        s_or_b32 s44, s44, s45
        s_xor_b32 s45, s13, s60
        s_or_b32 s44, s44, s45
        s_xor_b32 s45, s15, s61
        s_or_b32 s44, s44, s45
        s_xor_b32 s45, s17, s60
        s_or_b32 s44, s44, s45
        s_xor_b32 s45, s19, s61
        s_or_b32 s44, s44, s45
        s_cbranch_scc1 L_mlpoll
        v_cmp_eq_u32 s[52:53], 1, v2
        v_cmp_eq_u32 s[54:55], 2, v2
        v_cmp_eq_u32 s[56:57], 3, v2
        v_mov_b32 v8, s4
        v_mov_b32 v10, s6
        v_mov_b32 v9, s8
        v_mov_b32 v11, s10
        v_cndmask_b32 v8, v8, v9, s[52:53]
        v_cndmask_b32 v10, v10, v11, s[52:53]
        v_mov_b32 v9, s12
        v_mov_b32 v11, s14
        v_cndmask_b32 v8, v8, v9, s[54:55]
        v_cndmask_b32 v10, v10, v11, s[54:55]
        v_mov_b32 v9, s16
        v_mov_b32 v11, s18
        v_cndmask_b32 v8, v8, v9, s[56:57]
        v_cndmask_b32 v10, v10, v11, s[56:57]
        v_mov_b32 v12, v8
        v_mov_b32 v13, v8
        s_nop 1
        v_permlane32_swap_b32 v12, v13
        v_max_f32 v12, v12, v13
        v_mov_b32 v13, v12
        s_nop 1
        v_permlane16_swap_b32 v12, v13
        v_max_f32 v12, v12, v13
        v_sub_f32 v12, v8, v12
        v_mul_f32 v12, 0x3fb8aa3b, v12
        v_exp_f32 v12, v12
        s_nop 0
        v_mul_f32 v13, v12, v10
        v_mov_b32 v14, v13
        s_nop 1
        v_permlane32_swap_b32 v13, v14
        v_add_f32 v13, v13, v14
        v_mov_b32 v14, v13
        s_nop 1
        v_permlane16_swap_b32 v13, v14
        v_add_f32 v13, v13, v14
        v_rcp_f32 v13, v13
        s_nop 0
        v_mul_f32 v22, v12, v13
        """)
        self.stamp(3)
        self.lds_wait(F_OP, 1, 8, sleep=1)
        A(f"""
        L_opoll:
        global_load_dwordx4 v[8:11], v5, s[28:29] sc1
        global_load_dwordx4 v[12:15], v5, s[28:29] offset:256 sc1
        s_add_u32 s62, s62, 64
        s_cmp_gt_u32 s62, 0x400000
        s_cbranch_scc1 L_end
        s_waitcnt vmcnt(0)
        v_xor_b32 v16, s60, v9
        v_xor_b32 v17, s61, v11
        v_xor_b32 v18, s60, v13
        v_xor_b32 v19, s61, v15
        v_or3_b32 v16, v16, v17, v18
        v_or_b32 v16, v16, v19
        v_cmp_ne_u32 vcc, 0, v16
        s_cbranch_vccnz L_opoll
        v_mul_f32 v8, v8, v22
        v_mul_f32 v10, v10, v22
        v_mul_f32 v12, v12, v22
        v_mul_f32 v14, v14, v22
        s_nop 0
        v_permlane32_swap_b32 v8, v10
        v_permlane32_swap_b32 v12, v14
        v_add_f32 v8, v8, v10
        v_add_f32 v12, v12, v14
        s_nop 1
        v_permlane16_swap_b32 v8, v12
        v_add_f32 v8, v8, v12
        v_cvt_pk_bf16_f32 v8, v8, v8
        ds_write_b16 v6, v8
        s_mov_b64 exec, 1
        ds_write_b32 v20, v21
        s_mov_b64 exec, -1
        """)
        self.stamp(4)
        A("s_branch L_end")
        A(f"""
        L_M0:
        s_setprio 3
        v_and_b32 v2, 7, v0
        v_lshrrev_b32 v3, 5, v0
        v_lshl_add_u32 v2, v2, 1, v3
        s_mul_i32 s44, s58, 1152
        s_lshl_b32 s45, s59, 5
        s_add_u32 s44, s44, s45
        v_lshlrev_b32 v3, 1, v2
        v_add_u32 v3, s44, v3
        global_load_ushort v4, v3, s[4:5]
        v_mov_b32 v5, 0
        global_load_ushort v5, v5, s[22:23]
        v_lshlrev_b32 v6, 6, v2
        v_add_u32 v6, {GP}, v6
        s_lshl_b32 s44, s2, 13
        s_add_u32 s44, s44, {W_S}
        v_lshlrev_b32 v7, 4, v0
        v_add_u32 v7, s44, v7
        v_add_u32 v1, 0x1000, v7
        """)
        self.lds_wait(F_G, 4, 8, sleep=1)
        A(f"""
        ds_read_b128 v[8:11], v6
        ds_read_b128 v[12:15], v6 offset:16
        ds_read_b128 v[16:19], v6 offset:32
        ds_read_b128 v[20:23], v6 offset:48
        s_waitcnt lgkmcnt(0)
        """)
        for i in range(9, 24): A(f"v_add_f32 v8, v8, v{i}")
        self.rb(8)
        A("""
        s_waitcnt vmcnt(0)
        v_lshlrev_b32 v4, 16, v4
        v_lshlrev_b32 v5, 16, v5
        v_add_f32 v8, v8, v5
        """)
        self.rb(8)
        A("""
        v_mul_f32 v9, 0xbfb8aa3b, v8
        v_exp_f32 v9, v9
        s_nop 0
        v_add_f32 v9, 1.0, v9
        v_rcp_f32 v9, v9
        s_nop 0
        v_mul_f32 v5, v8, v9
        """)
        self.rb(5)
        A("""
        v_bfe_u32 v8, v0, 3, 2
        v_cmp_eq_u32 s[52:53], 0, v8
        """)
        self.stamp(3)
        if self.o.get('notail'): A("s_branch L_end")
        self.lds_wait(F_PJ, 12, 8, sleep=1)
        self.stamp(4)
        A("L_spoll:")
        for n in range(8):
            A(f"global_load_dwordx4 v[{32+4*n}:{35+4*n}], {'v7' if n < 4 else 'v1'}, s[28:29] offset:{(n%4)*1024} sc1")
        A(f"""
        s_add_u32 s62, s62, 64
        s_cmp_gt_u32 s62, 0x400000
        s_cbranch_scc1 L_end
        v_mov_b32 v8, 0
        v_mov_b32 v10, 0
        v_mov_b32 v11, 0
        """)
        for n in range(8):
            A(f"""
            s_waitcnt vmcnt({7-n})
            v_xor_b32 v9, s60, v{33+4*n}
            v_xor_b32 v12, s61, v{35+4*n}
            v_or3_b32 v8, v8, v9, v12
            v_add_f32 v10, v10, v{32+4*n}
            v_add_f32 v11, v11, v{34+4*n}
            """)
        A(f"""
        v_cmp_ne_u32 vcc, 0, v8
        s_cbranch_vccnz L_spoll
        s_nop 0
        v_permlane32_swap_b32 v10, v11
        v_add_f32 v10, v10, v11
        v_mov_b32 v11, v10
        s_nop 1
        v_permlane16_swap_b32 v10, v11
        v_add_f32 v10, v10, v11
        s_nop 1
        v_add_f32_dpp v10, v10, v10 row_ror:8 row_mask:0xf bank_mask:0xf
        """)
        self.rb(10)
        A("v_mul_f32 v10, v10, v5")
        self.rb(10)
        A(f"""
        v_add_f32 v10, v10, v4
        v_cvt_pk_bf16_f32 v10, v10, v10
        s_mov_b64 exec, s[52:53]
        global_store_short v3, v10, s[24:25]
        s_mov_b64 exec, -1
        """)
        self.stamp(5)
        A(f"""
        s_cmp_lg_u32 s2, 0
        s_cbranch_scc1 L_end
        v_mov_b32 v8, 0
        v_mov_b32 v10, s60
        v_mov_b32 v11, s61
        s_mov_b64 exec, 1
        global_store_dwordx2 v8, v[10:11], s[28:29] offset:{W_EPOCH}
        s_mov_b64 exec, -1
        """)

if __name__ == "__main__":
    import argparse
    ap = argparse.ArgumentParser()
    ap.add_argument("--out", default="recurrent_scan__sliding_block_cached__mixer_token_mlp__decode.s")
    ap.add_argument("--stamps", action="store_true")
    ap.add_argument("--depth", type=int, default=4)
    ap.add_argument("--opt", action="append", default=[])
    a = ap.parse_args()
    opts = dict(x.split("=", 1) for x in a.opt)
    open(a.out, "w").write(G(a.stamps, a.depth, opts).gen())
```

```python
import sys, math, struct
NAME = "recurrent_scan__sliding_block_cached__mixer_token_mlp__decode_kernel"

KBUF = 0
WQ   = 131072
PB   = WQ
OPART = WQ + 4096
XN   = WQ + 18432
HB   = XN + 4608
QS   = HB + 2304
GP   = QS + 512
INIT = GP + 1024
(F_X, F_Q, F_K, F_M, F_P, F_WO, F_O, F_OB, F_G, F_T, F_WQ, F_QP, F_F, F_S, F_VI) = [INIT + 4 * i for i in range(15)]
TAG  = INIT + 64
FB   = INIT + 128
MA   = INIT + 96
LA   = INIT + 192
OB   = INIT + 512
LDS_BYTES = INIT + 1024
assert LDS_BYTES <= 163840, LDS_BYTES
WO8 = 65536
W_EPOCH = 0
W_Q  = 0x1000
W_ML = 0x90000
W_O  = 0xA0000
W_S  = 0x140000
W_G  = 0x94000
STAMP_OFF = 0x10000000
LIMIT = 0x400000
f2u = lambda f: struct.unpack("<I", struct.pack("<f", f))[0]
DPPF = "row_mask:0xf bank_mask:0xf"


class G:
    def __init__(self, stamps=False, opts=None):
        self.L = []
        self.stamps = stamps
        self.o = opts or {}
        self.uid = 0

    def opt(self, k, d):
        v = self.o.get(k, d)
        return type(d)(v) if not isinstance(d, str) else v

    def A(self, s):
        for line in s.strip("\n").split("\n"):
            t = line.strip()
            if not t:
                continue
            self.L.append(t if t.endswith(":") else "  " + t)

    def lab(self, p="L"):
        self.uid += 1
        return f"{p}_{self.uid}"

    def stamp(self, i):
        if self.stamps:
            self.A(f"s_memrealtime s[{64+2*i}:{65+2*i}]\ns_waitcnt lgkmcnt(0)")

    def guard(self, inc):
        self.A(f"s_add_u32 s62, s62, {inc}\ns_cmp_gt_u32 s62, {LIMIT:#x}\ns_cbranch_scc1 L_end")

    def lds_wait(self, addr, val, vt, sleep=0):
        l = self.lab("LW")
        self.A(f"v_mov_b32 v{vt}, {addr}\n{l}:\nds_read_b32 v{vt+1}, v{vt}")
        self.guard(1)
        if sleep:
            self.A(f"s_sleep {sleep}")
        self.A(f"""
        s_waitcnt lgkmcnt(0)
        v_readfirstlane_b32 s46, v{vt+1}
        s_nop 0
        s_cmp_lt_u32 s46, {val}
        s_cbranch_scc1 {l}
        """)

    def lds_signal(self, addr, vt, rtn=False):
        self.A(f"v_mov_b32 v{vt}, {addr}\nv_mov_b32 v{vt+1}, 1\ns_mov_b64 exec, 1")
        self.A(f"ds_add_rtn_u32 v{vt+1}, v{vt}, v{vt+1}" if rtn else f"ds_add_u32 v{vt}, v{vt+1}")
        self.A("s_mov_b64 exec, -1")

    def wave_sum(self, v, s):
        ins = f"v_add_f32_dpp v{v}, v{v}, v{v}"
        self.A(f"""
        s_nop 1
        {ins} quad_perm:[1,0,3,2] {DPPF}
        s_nop 1
        {ins} quad_perm:[2,3,0,1] {DPPF}
        s_nop 1
        {ins} row_half_mirror {DPPF}
        s_nop 1
        {ins} row_mirror {DPPF}
        s_nop 1
        {ins} row_bcast:15 row_mask:0xa bank_mask:0xf
        s_nop 1
        {ins} row_bcast:31 row_mask:0xc bank_mask:0xf
        s_nop 0
        v_readlane_b32 s{s}, v{v}, 63
        s_nop 1
        """)

    def rb(self, v):
        self.A(f"v_cvt_pk_bf16_f32 v{v}, v{v}, v{v}\nv_and_b32 v{v}, 0xffff0000, v{v}")

    def rb2(self, a, b):
        self.A(f"v_cvt_pk_bf16_f32 v{b}, v{a}, v{b}\nv_lshlrev_b32 v{a}, 16, v{b}\nv_and_b32 v{b}, 0xffff0000, v{b}")

    def read_tag(self, vt):
        self.A(f"""
        v_mov_b32 v{vt}, {TAG}
        ds_read_b64 v[{vt}:{vt+1}], v{vt}
        s_waitcnt lgkmcnt(0)
        v_readfirstlane_b32 s60, v{vt}
        v_readfirstlane_b32 s61, v{vt+1}
        s_nop 1
        """)

    def xlane45(self, v, t, op):
        self.A(f"""
        v_mov_b32 v{t}, v{v}
        s_nop 1
        v_permlane32_swap_b32 v{v}, v{t}
        v_{op}_f32 v{v}, v{v}, v{t}
        v_mov_b32 v{t}, v{v}
        s_nop 1
        v_permlane16_swap_b32 v{v}, v{t}
        v_{op}_f32 v{v}, v{v}, v{t}
        """)

    def tagchk(self, sets, acc, t):
        first = True
        for b in sets:
            if first:
                self.A(f"v_xor_b32 v{acc}, s60, v{b+1}\nv_xor_b32 v{t}, s61, v{b+3}\nv_or_b32 v{acc}, v{acc}, v{t}")
                first = False
            else:
                self.A(f"v_xor_b32 v{t}, s60, v{b+1}\nv_xor_b32 v{t+1}, s61, v{b+3}\nv_or3_b32 v{acc}, v{acc}, v{t}, v{t+1}")
        self.A(f"v_cmp_ne_u32 vcc, 0, v{acc}")

    def poll2(self, vaddr, off2, A0, B0, acc, name, consume, pre=None):
        A = self.A
        ld = lambda r: (f"global_load_dwordx4 v[{r}:{r+3}], v{vaddr}, s[28:29] sc1\n"
                        f"global_load_dwordx4 v[{r+4}:{r+7}], v{vaddr}, s[28:29] offset:{off2} sc1")
        A(ld(A0))
        if pre: pre()
        A(f"{name}:\n" + ld(B0))
        self.guard(64)
        A("s_waitcnt vmcnt(2)")
        self.tagchk([A0, A0 + 4], acc, acc + 1)
        A(f"s_cbranch_vccz {name}_a\n" + ld(A0) + "\ns_waitcnt vmcnt(2)")
        self.tagchk([B0, B0 + 4], acc, acc + 1)
        A(f"s_cbranch_vccnz {name}")
        consume(B0)
        A(f"s_branch {name}_ok\n{name}_a:")
        consume(A0)
        A(f"{name}_ok:")

    def poll2m(self, vaddr, off2, A0, acc, name, pre=None, sleep=0, pol="sc1"):
        A = self.A
        ld = (f"global_load_dwordx4 v[{A0}:{A0+3}], v{vaddr}, s[28:29] {pol}\n"
              f"global_load_dwordx4 v[{A0+4}:{A0+7}], v{vaddr}, s[28:29] offset:{off2} {pol}")
        A(ld)
        if pre: pre()
        A(f"{name}:")
        if sleep: A(f"s_sleep {sleep}")
        A(ld)
        self.guard(64)
        A("s_waitcnt vmcnt(2)")
        self.tagchk([A0, A0 + 4], acc, acc + 1)
        A(f"s_mov_b64 exec, vcc\ns_cbranch_vccnz {name}\ns_mov_b64 exec, -1")

    def frag_reads(self):
        A = self.A
        for d in range(3):
            A(f"v_mov_b32 v4, v{51+d}")
            for k in range(2):
                r = 96 + (d * 2 + k) * 4
                A(f"""
                ds_read_b64_tr_b16 v[{r}:{r+1}], v4
                v_add_u32 v4, s{57+d}, v4
                ds_read_b64_tr_b16 v[{r+2}:{r+3}], v4
                """)
                if k == 0:
                    A(f"v_add_u32 v4, s{57+d}, v4")
        A(f"""
        v_mov_b32 v61, s60
        v_mov_b32 v63, s61
        v_mov_b32 v4, {F_OB}
        v_cndmask_b32 v61, v61, v63, s[54:55]
        """)

    def gen(self):
        A = self.A
        for line in open("recurrent_scan__sliding_block_cached__mixer_token_mlp__decode.s.ref").read().split("\n"):
            if line.startswith("; @launch"):
                self.L.append(f"; @launch grid=(256,1,1) block=(1024,1,1) lds={LDS_BYTES}")
                break
            self.L.append(line)
        self.L += ['.amdgcn_target "amdgcn-amd-amdhsa--gfx950"', ".text", f".globl {NAME}", ".p2align 8",
                   f".type {NAME},@function", f"{NAME}:"]
        if self.stamps:
            A("s_memrealtime s[64:65]")
            for i in range(66, 96):
                A(f"s_mov_b32 s{i}, 0")
        A(f"""
        s_cmp_ge_u32 s2, 256
        s_cbranch_scc1 L_exit
        s_load_dwordx16 s[4:19], s[0:1], 0
        s_load_dwordx8 s[20:27], s[0:1], 64
        s_load_dwordx2 s[28:29], s[0:1], 96
        v_lshrrev_b32 v1, 6, v0
        v_and_b32 v0, 63, v0
        v_readfirstlane_b32 s3, v1
        s_and_b32 s30, s2, 15
        s_lshr_b32 s31, s2, 4
        {'s_xor_b32 s3, s3, 8' if self.opt('sfirst', 0) else ''}
        s_lshr_b32 s32, s31, 2
        s_and_b32 s33, s31, 3
        s_lshl_b32 s35, s32, 4
        s_add_u32 s35, s35, s30
        s_mov_b32 s62, 0
        s_mov_b32 s39, 0x20000
        s_mov_b32 s43, 0x20000
        v_lshlrev_b32 v1, 4, v0
        v_lshrrev_b32 v2, 4, v0
        s_cmp_lt_u32 s3, 8
        s_cbranch_scc0 L_S
        s_cmp_lt_u32 s3, 4
        s_cbranch_scc0 L_M
        """)
        A(f"""
        s_setprio {self.opt('prioA', 3)}
        s_mul_i32 s44, s3, 1152
        s_movk_i32 s38, 1152
        v_lshlrev_b32 v14, 1, v0
        s_cmp_lg_u32 s3, 0
        s_cbranch_scc1 L_noinit
        v_mov_b32 v4, 0
        v_mov_b32 v5, 0
        v_mov_b32 v6, 0
        v_mov_b32 v7, 0
        v_add_u32 v3, {INIT}, v1
        ds_write_b128 v3, v[4:7]
        L_noinit:
        s_waitcnt lgkmcnt(0)
        s_add_u32 s36, s4, s44
        s_addc_u32 s37, s5, 0
        buffer_load_dwordx4 v[16:19], v1, s[36:39], 0 offen
        buffer_load_ushort v20, v14, s[36:39], 0 offen offset:1024
        s_load_dwordx2 s[60:61], s[28:29], {W_EPOCH}
        s_barrier
        s_branch L_A
        """)
        A(f"""
        L_M:
        s_setprio {self.opt('prioM', 2)}
        s_sub_u32 s34, s3, 4
        s_lshr_b32 s46, s2, 3
        s_waitcnt lgkmcnt(0)
        s_cmp_lg_u32 s34, 3
        s_cbranch_scc1 L_nowarmc
        s_cmp_lt_u32 s46, (L_code_end-{NAME})>>10
        s_cbranch_scc0 L_nowarmc
        s_getpc_b64 s[44:45]
        L_pc:
        s_sub_u32 s44, s44, L_pc-{NAME}
        s_subb_u32 s45, s45, 0
        s_lshl_b32 s46, s46, 10
        v_add_u32 v3, s46, v1
        global_load_dwordx4 v[88:91], v3, s[44:45]
        L_nowarmc:
        s_cmp_lg_u32 s34, 2
        s_cbranch_scc1 L_nowarmw
        s_cmp_lt_u32 s46, 27
        s_cbranch_scc0 L_nowarmw
        s_mov_b64 s[44:45], s[16:17]
        s_cmp_lt_u32 s46, 9
        s_cbranch_scc1 L_warmw
        s_mov_b64 s[44:45], s[18:19]
        s_sub_u32 s46, s46, 9
        s_cmp_lt_u32 s46, 9
        s_cbranch_scc1 L_warmw
        s_mov_b64 s[44:45], s[20:21]
        s_sub_u32 s46, s46, 9
        L_warmw:
        s_lshl_b32 s46, s46, 10
        v_add_u32 v3, s46, v1
        global_load_dwordx4 v[88:91], v3, s[44:45]
        L_nowarmw:
        s_barrier
        s_cmp_lt_u32 s2, {0 if self.opt('nom', 0) else 144}
        s_cbranch_scc0 L_end
        s_branch L_M2
        """)
        A("L_S:")
        self.gen_S()
        self.gen_proj()
        self.gen_A()
        self.gen_LN()
        self.gen_M()
        A("L_end:")
        if self.stamps:
            A(f"""
            s_mov_b64 exec, -1
            s_waitcnt lgkmcnt(0)
            s_memrealtime s[94:95]
            s_lshl_b32 s44, s2, 4
            s_add_u32 s44, s44, s3
            s_lshl_b32 s44, s44, 7
            s_add_u32 s44, s44, {STAMP_OFF}
            s_add_u32 s28, s28, s44
            s_addc_u32 s29, s29, 0
            s_waitcnt vmcnt(0) lgkmcnt(0)
            """)
            for i in range(32):
                A(f"v_writelane_b32 v6, s{64+i}, {i}")
            A("""
            v_lshlrev_b32 v4, 2, v0
            s_mov_b32 exec_hi, 0
            global_store_dword v4, v6, s[28:29]
            """)
        A("L_exit:")
        A("s_endpgm")
        A("L_code_end:")
        self.L += ['.section .rodata,"a"', ".p2align 6", f".amdhsa_kernel {NAME}",
                   "  .amdhsa_next_free_vgpr 128", "  .amdhsa_next_free_sgpr 96", "  .amdhsa_accum_offset 128",
                   "  .amdhsa_group_segment_fixed_size 0", "  .amdhsa_kernarg_size 104", "  .amdhsa_user_sgpr_count 2",
                   "  .amdhsa_user_sgpr_kernarg_segment_ptr 1", "  .amdhsa_system_sgpr_workgroup_id_x 1",
                   ".end_amdhsa_kernel"]
        return "\n".join(self.L) + "\n"

    def gen_S(self):
        A = self.A
        D = self.opt("depth", 4)
        A(f"""
        s_setprio {self.opt('prioS', 1)}
        s_sub_u32 s34, s3, 8
        s_mul_i32 s44, s32, {144*8192}
        s_lshl_b32 s45, s30, 9
        s_add_u32 s44, s44, s45
        s_lshl_b32 s45, s33, 7
        s_add_u32 s44, s44, s45
        s_mov_b32 s42, {143*8192+128}
        v_lshrrev_b32 v4, 3, v0
        v_bfe_u32 v3, v0, 4, 2
        v_lshlrev_b32 v3, 1, v3
        v_and_b32 v5, 7, v0
        v_xor_b32 v3, v3, v5
        v_lshlrev_b32 v3, 4, v3
        v_lshl_add_u32 v4, v4, 13, v3
        s_lshl_b32 s45, s34, 10
        s_add_u32 m0, s45, {WQ}
        s_lshl_b32 s45, s34, 16
        s_lshl_b32 s46, s35, 21
        s_lshl_b32 s47, s33, 17
        s_add_u32 s46, s46, s47
        s_add_u32 s46, s46, {6144*256}
        s_mov_b32 s38, 0x20000
        s_lshl_b32 s47, s34, 14
        s_add_u32 s47, s47, s46
        s_mul_i32 s51, s2, 5
        s_add_u32 s51, s51, s31
        v_lshlrev_b32 v3, 6, v2
        v_xor_b32 v3, v1, v3
        v_mov_b32 v5, {F_T}
        v_mov_b32 v6, 1
        s_mov_b32 s50, s34
        s_waitcnt lgkmcnt(0)
        s_add_u32 s40, s10, s44
        s_addc_u32 s41, s11, 0
        s_add_u32 s36, s6, s46
        s_addc_u32 s37, s7, 0
        L_wqloop:
        buffer_load_dwordx4 v4, s[40:43], s45 offen nt lds
        s_add_u32 m0, m0, 0x2000
        s_add_u32 s45, s45, 0x80000
        s_cmp_lt_u32 s45, {18*65536}
        s_cbranch_scc1 L_wqloop
        s_add_u32 s40, s8, s47
        s_addc_u32 s41, s9, 0
        s_movk_i32 s42, 0x4000
        """)
        self.stamp(1)
        A(f"""
        L_kloop:
        s_and_b32 s44, s50, 7
        s_lshr_b32 s45, s50, 3
        s_mul_i32 s46, s44, 3
        s_add_u32 s46, s46, s51
        s_add_u32 s46, s46, s45
        s_and_b32 s46, s46, 15
        s_lshl_b32 s44, s44, 4
        s_add_u32 s46, s46, s44
        s_lshl_b32 s46, s46, 10
        s_add_u32 s44, s44, s45
        s_lshl_b32 m0, s44, 10
        s_and_b32 s47, s45, 3
        s_lshl_b32 s47, s47, 4
        v_xor_b32 v4, s47, v3
        s_waitcnt vmcnt({D-1})
        buffer_load_dwordx4 v4, s[36:39], s46 offen nt lds
        s_cmp_lt_u32 s50, 8
        s_cbranch_scc0 L_knobar
        s_barrier
        L_knobar:
        s_cmp_lt_u32 s50, {8*(D-2)}
        s_cbranch_scc0 L_kdyn
        s_add_u32 s50, s50, 8
        s_branch L_kloop
        L_kdyn:
        s_cmp_lt_u32 s50, {8*(D-1)}
        s_cbranch_scc0 L_kdyn2
        s_add_u32 s50, s50, 8
        s_mov_b64 exec, 1
        ds_add_rtn_u32 v7, v5, v6
        s_mov_b64 exec, -1
        s_branch L_kloop
        L_kdyn2:
        s_waitcnt lgkmcnt(0)
        v_readfirstlane_b32 s49, v7
        s_mov_b64 exec, 1
        ds_add_rtn_u32 v7, v5, v6
        s_cmp_lt_u32 s50, {8*D}
        s_cbranch_scc0 L_knosig
        ds_add_u32 v5, v6 offset:{F_WQ-F_T}
        L_knosig:
        s_mov_b64 exec, -1
        s_add_u32 s50, s49, {8*D}
        s_cmp_lt_u32 s50, 128
        s_cbranch_scc1 L_kloop
        s_mul_i32 s46, s34, 3
        s_add_u32 s46, s46, s51
        s_and_b32 s46, s46, 15
        s_lshl_b32 s46, s46, 10
        s_movk_i32 s48, 0x400
        s_movk_i32 s49, 0x3fff
        s_waitcnt lgkmcnt(0)
        """)
        self.stamp(2)
        VB = 64
        DV = self.opt("depthv", D)
        for n in range(16):
            if n <= D - 1 or n < self.opt("vpaced", 4):
                A(f"s_waitcnt vmcnt({(D if n <= D - 1 else DV)-1})")
            if n == D - 1:
                self.lds_signal(F_K, 4)
            A(f"""
            buffer_load_dwordx4 v[{VB+4*n}:{VB+4*n+3}], v1, s[40:43], s46 offen nt
            s_add_u32 s46, s46, s48
            s_and_b32 s46, s46, s49
            """)
            if n == D - 1:
                self.S_setup()
        if self.opt("wolast", 0):
            self.lds_signal(F_VI, 4)
        self.stamp(3)
        self.lds_wait(F_P, 4, 4, sleep=1)
        self.stamp(4)
        A(f"""
        s_setprio 3
        ds_read_b128 v[16:19], v12
        ds_read_b128 v[20:23], v12 offset:16
        ds_read_b128 v[24:27], v12 offset:32
        ds_read_b128 v[28:31], v12 offset:48
        """)
        self.read_tag(4)
        A(f"""
        v_mov_b32 v41, s60
        v_mov_b32 v43, s61
        v_mov_b32 v45, s60
        v_mov_b32 v47, s61
        """)
        for n in range(16):
            a = 36 if n % 2 == 0 else 4
            A(f"""
            v_and_b32 v{a}, v{16+n}, v8
            v_and_b32 v{a+1}, v{16+n}, v9
            v_and_b32 v{a+2}, v{16+n}, v10
            v_and_b32 v{a+3}, v{16+n}, v11
            s_waitcnt vmcnt({15-n})
            s_nop 0
            v_mfma_f32_16x16x32_bf16 v[32:35], v[{a}:{a+3}], v[{VB+4*n}:{VB+4*n+3}], v[32:35]
            """)
        self.stamp(9)
        A(f"""
        v_mov_b32 v8, {F_O}
        v_mov_b32 v9, 1
        s_nop 5
        ds_write_b128 v15, v[32:35]
        s_mov_b64 exec, 1
        ds_add_rtn_u32 v9, v8, v9
        s_mov_b64 exec, -1
        ds_read_b32 v10, v8 offset:{F_F-F_O}
        ds_read_b128 v[36:39], v59
        """)
        for i in range(8):
            A(f"ds_read_b128 v[{64+4*i}:{67+4*i}], v14 offset:{1024*i}")
        A("""
        s_waitcnt lgkmcnt(9)
        v_readfirstlane_b32 s47, v9
        v_readfirstlane_b32 s46, v10
        s_nop 0
        s_cmp_lg_u32 s47, 7
        s_cbranch_scc1 L_S_notlast
        """)
        if self.opt("notail", 0): A("s_branch L_end")
        ld = "\n".join(f"global_load_dwordx4 v[{96+8*i}:{99+8*i}], v{48+i}, s[28:29] sc1\n"
                        f"global_load_dwordx4 v[{100+8*i}:{103+8*i}], v{48+i}, s[28:29] offset:1024 sc1" for i in range(3))
        A(ld)
        for i in range(0, 8, 2):
            A(f"""
            s_waitcnt lgkmcnt({6-i})
            v_pk_add_f32 v[{64+4*i}:{65+4*i}], v[{64+4*i}:{65+4*i}], v[{68+4*i}:{69+4*i}]
            v_pk_add_f32 v[{66+4*i}:{67+4*i}], v[{66+4*i}:{67+4*i}], v[{70+4*i}:{71+4*i}]
            """)
            if i in (2, 6):
                b = 64 + 4 * (i - 2)
                A(f"""
                v_pk_add_f32 v[{b}:{b+1}], v[{b}:{b+1}], v[{b+8}:{b+9}]
                v_pk_add_f32 v[{b+2}:{b+3}], v[{b+2}:{b+3}], v[{b+10}:{b+11}]
                """)
        A(f"""
        v_add_f32 v40, v64, v80
        v_add_f32 v42, v65, v81
        v_add_f32 v44, v66, v82
        v_add_f32 v46, v67, v83
        s_cmp_eq_u32 s46, {2 if self.opt('local', 1) else 99}
        s_cbranch_scc1 L_opub_local
        global_store_dwordx4 v13, v[40:43], s[28:29] sc1
        global_store_dwordx4 v13, v[44:47], s[28:29] offset:1024 sc1
        s_branch L_opub_done
        L_opub_local:
        global_store_dwordx4 v13, v[40:43], s[28:29]
        global_store_dwordx4 v13, v[44:47], s[28:29] offset:1024
        L_opub_done:
        """)
        self.stamp(5)
        A("s_cmp_lg_u32 s46, 0\ns_cbranch_scc1 L_fok")
        self.lds_wait(F_F, 1, 10)
        A(f"""
        ds_read_b128 v[36:39], v59
        s_waitcnt lgkmcnt(0)
        L_fok:
        v_mul_f32 v64, v40, v36
        v_mul_f32 v65, v42, v36
        v_mul_f32 v66, v44, v36
        v_mul_f32 v67, v46, v36
        v_mov_b32 v9, 1
        s_waitcnt vmcnt(2)
        s_branch L_ochk
        L_opoll:
        """)
        A(ld)
        self.guard(64)
        A("s_waitcnt vmcnt(0)\nL_ochk:")
        self.tagchk([96 + 4 * i for i in range(6)], 16, 17)
        A("s_mov_b64 exec, vcc\ns_cbranch_vccnz L_opoll\ns_mov_b64 exec, -1")
        for i in range(3):
            A(f"""
            v_fmac_f32 v64, v{96+8*i}, v{37+i}
            v_fmac_f32 v65, v{98+8*i}, v{37+i}
            v_fmac_f32 v66, v{100+8*i}, v{37+i}
            v_fmac_f32 v67, v{102+8*i}, v{37+i}
            """)
        A(f"""
        v_cvt_pk_bf16_f32 v64, v64, v65
        v_cvt_pk_bf16_f32 v65, v66, v67
        ds_write_b64 v58, v[64:65]
        s_mov_b64 exec, 1
        ds_write_b32 v8, v9 offset:{F_OB-F_O}
        s_mov_b64 exec, -1
        """)
        self.stamp(12)
        A(f"""
        s_branch L_end
        L_S_notlast:
        s_cmp_lt_u32 s47, 4
        s_cbranch_scc0 L_end
        s_add_u32 s56, s47, 4
        s_mov_b32 s57, 0
        """)

    def S_setup(self):
        A = self.A
        A(f"""
        v_and_b32 v4, 1, v0
        v_cmp_eq_u32 vcc, 1, v4
        v_mov_b32 v5, 0xffff
        v_mov_b32 v6, 0xffff0000
        v_bfe_u32 v4, v0, 1, 2
        v_cndmask_b32 v5, v5, v6, vcc
        """)
        for i in range(4):
            A(f"v_cmp_eq_u32 vcc, {i}, v4\ns_nop 1\nv_cndmask_b32 v{8+i}, 0, v5, vcc")
        A(f"""
        v_bfe_u32 v4, v0, 3, 1
        v_lshlrev_b32 v4, 11, v4
        v_lshl_add_u32 v4, v2, 6, v4
        s_lshl_b32 s44, s34, 8
        s_add_u32 s44, s44, {PB}
        v_add_u32 v12, s44, v4
        v_mov_b32 v32, 0
        v_mov_b32 v33, 0
        v_mov_b32 v34, 0
        v_mov_b32 v35, 0
        v_and_b32 v5, 15, v0
        s_lshl_b32 s44, s35, 13
        s_add_u32 s44, s44, {W_O}
        s_lshl_b32 s45, s33, 11
        s_add_u32 s47, s45, s44
        v_add_u32 v13, s47, v1
        """)
        for i in range(3):
            A(f"""
            s_add_u32 s45, s45, 0x800
            s_and_b32 s45, s45, 0x1fff
            s_add_u32 s47, s45, s44
            v_add_u32 v{48+i}, s47, v1
            """)
        A(f"""
        v_add_u32 v14, {OPART}, v1
        v_lshrrev_b32 v4, 5, v0
        v_lshlrev_b32 v59, 4, v4
        v_add_u32 v59, {FB}, v59
        v_lshlrev_b32 v4, 9, v4
        v_lshl_add_u32 v4, v5, 5, v4
        v_bfe_u32 v5, v0, 4, 1
        v_lshl_add_u32 v4, v5, 4, v4
        s_lshl_b32 s44, s34, 10
        s_add_u32 s44, s44, {OPART}
        v_add_u32 v15, s44, v4
        v_lshrrev_b32 v6, 3, v0
        v_lshlrev_b32 v6, 6, v6
        v_and_b32 v7, 3, v0
        v_lshl_add_u32 v6, v7, 4, v6
        v_bfe_u32 v7, v0, 2, 1
        v_lshl_add_u32 v6, v7, 3, v6
        v_add_u32 v58, {OB}, v6
        """)

    def gen_proj(self):
        A = self.A
        A("L_proj:")
        if self.opt("notail", 0):
            A("s_branch L_end")
        A(f"""
        s_setprio 0
        v_bfe_u32 v5, v0, 2, 2
        v_lshl_add_u32 v6, v2, 2, v5
        v_and_b32 v7, 3, v0
        v_lshlrev_b32 v7, 3, v7
        v_and_b32 v8, 7, v6
        v_xor_b32 v8, s56, v8
        v_lshl_add_u32 v8, v8, 5, v7
        v_lshl_add_u32 v50, v6, 8, v8
        v_bfe_u32 v8, v6, 1, 2
        v_xor_b32 v8, s3, v8
        v_and_b32 v8, 3, v8
        v_lshl_add_u32 v8, v8, 5, v7
        v_lshl_add_u32 v51, v6, 7, v8
        v_add_u32 v51, {WO8}, v51
        v_lshlrev_b32 v48, 4, v2
        v_add_u32 v48, {OB}, v48
        s_mul_i32 s44, s32, 36
        s_lshl_b32 s45, s33, 3
        s_add_u32 s45, s45, s56
        s_add_u32 s45, s45, s44
        s_lshl_b32 s45, s45, 11
        s_add_u32 s44, s44, s3
        s_add_u32 s44, s44, 32
        s_lshl_b32 s44, s44, 11
        v_mov_b32 v6, s45
        v_mov_b32 v7, s44
        v_cmp_eq_u32 s[54:55], 1, v2
        v_and_b32 v8, 1, v0
        v_cmp_eq_u32 vcc, 1, v8
        v_cndmask_b32 v6, v6, v7, s[54:55]
        v_mov_b32 v61, s60
        v_mov_b32 v63, s61
        v_cndmask_b32 v61, v61, v63, vcc
        s_lshl_b32 s44, s30, 7
        s_add_u32 s44, s44, {W_S}
        v_and_b32 v7, 15, v0
        v_lshl_add_u32 v6, v7, 3, v6
        v_add_u32 v54, s44, v6
        """)
        self.lds_wait(F_WO, 4, 4, sleep=1)
        self.stamp(6)
        for k in range(8):
            if k == 4: A("s_waitcnt lgkmcnt(4)")
            A(f"ds_read_b64_tr_b16 v[{64+4*k}:{65+4*k}], v50 offset:{8192*k}")
            A(f"ds_read_b64_tr_b16 v[{66+4*k}:{67+4*k}], v50 offset:{8192*k+4096}")
        A("s_cmp_eq_u32 s57, 0\ns_cbranch_scc1 L_no8a\ns_waitcnt lgkmcnt(0)")
        for k in range(8):
            if k == 4: A("s_waitcnt lgkmcnt(4)")
            A(f"ds_read_b64_tr_b16 v[{96+4*k}:{97+4*k}], v51 offset:{4096*k}")
            A(f"ds_read_b64_tr_b16 v[{98+4*k}:{99+4*k}], v51 offset:{4096*k+2048}")
        A("L_no8a:\ns_waitcnt lgkmcnt(0)")
        self.lds_wait(F_O, 8, 6, sleep=1)
        A(f"""
        v_mov_b32 v4, {F_OB}
        L_obwait:
        ds_read_b32 v5, v4
        ds_read_b128 v[16:19], v48
        ds_read_b128 v[20:23], v48 offset:64
        """)
        self.guard(1)
        A("""
        s_waitcnt lgkmcnt(2)
        v_readfirstlane_b32 s46, v5
        s_nop 0
        s_cmp_eq_u32 s46, 0
        s_cbranch_scc1 L_obwait
        """)
        for k in range(2, 8):
            A(f"ds_read_b128 v[{16+4*k}:{19+4*k}], v48 offset:{64*k}")
        A("s_cmp_eq_u32 s57, 0\ns_cbranch_scc0 L_proj2")
        for k in range(8):
            A(f"s_waitcnt lgkmcnt({min(6, 7-k)})")
            c = "0" if k == 0 else "v[8:11]"
            A(f"v_mfma_f32_16x16x32_bf16 v[8:11], v[{16+4*k}:{19+4*k}], v[{64+4*k}:{67+4*k}], {c}")
        A("""
        s_mov_b64 exec, 0xffff
        s_nop 6
        v_mov_b32 v60, v8
        global_store_dwordx2 v54, v[60:61], s[28:29] sc1
        s_mov_b64 exec, -1
        """)
        self.stamp(8)
        A("s_branch L_end\nL_proj2:")
        for k in range(8):
            A(f"s_waitcnt lgkmcnt({min(6, 7-k)})")
            c = "0" if k == 0 else "v[8:11]"
            c2 = "0" if k == 0 else "v[12:15]"
            A(f"v_mfma_f32_16x16x32_bf16 v[8:11], v[{16+4*k}:{19+4*k}], v[{64+4*k}:{67+4*k}], {c}")
            A(f"v_mfma_f32_16x16x32_bf16 v[12:15], v[{16+4*k}:{19+4*k}], v[{96+4*k}:{99+4*k}], {c2}")
        A("""
        s_mov_b32 exec_hi, 0
        s_nop 6
        v_cndmask_b32 v60, v8, v12, s[54:55]
        global_store_dwordx2 v54, v[60:61], s[28:29] sc1
        s_mov_b64 exec, -1
        """)
        self.stamp(8)
        A("s_branch L_end")

    def gen_LN(self):
        A = self.A
        A("L_ln:")
        A("""
        v_add_f32 v31, v22, v23
        v_add_f32 v32, v24, v25
        v_add_f32 v33, v26, v27
        v_add_f32 v31, v31, v32
        v_add_f32 v32, v28, v29
        v_add_f32 v33, v33, v30
        v_add_f32 v31, v31, v32
        v_add_f32 v31, v31, v33
        """)
        self.wave_sum(31, 44)
        A("v_mov_b32 v31, 0x3ae38e39\nv_mul_f32 v31, s44, v31\nv_mov_b32 v32, 0")
        for i in range(22, 31):
            A(f"v_sub_f32 v33, v{i}, v31\nv_fmac_f32 v32, v33, v33")
        self.wave_sum(32, 45)
        self.rb(31)
        A("v_mov_b32 v32, 0x3ae38e39\nv_mul_f32 v32, s45, v32")
        self.rb(32)
        A("v_add_f32 v32, 0x3727c5ac, v32")
        self.rb(32)
        A("v_sqrt_f32 v32, v32\ns_nop 0")
        self.rb(32)
        A("v_rcp_f32 v32, v32")
        for i in range(22, 31):
            A(f"v_sub_f32 v{i}, v{i}, v31")
        for i in range(22, 30, 2):
            self.rb2(i, i + 1)
        self.rb(30)
        for i in range(22, 31):
            A(f"v_mul_f32 v{i}, v{i}, v32")
        for i in range(22, 30, 2):
            self.rb2(i, i + 1)
        self.rb(30)
        A("s_setpc_b64 s[50:51]")

    def unpack9(self, src, s9):
        for i in range(4):
            self.A(f"v_lshlrev_b32 v{22+2*i}, 16, v{src+i}\nv_and_b32 v{23+2*i}, 0xffff0000, v{src+i}")
        self.A(f"v_lshlrev_b32 v30, 16, v{s9}")

    def gen_A(self):
        A = self.A
        A(f"""
        L_A:
        s_add_u32 s44, s44, {XN}
        v_add_u32 v11, s44, v1
        v_add_u32 v12, s44, v14
        s_waitcnt vmcnt(0)
        """)
        self.stamp(1)
        self.unpack9(16, 20)
        A("s_call_b64 s[50:51], L_ln")
        A(f"""
        v_cvt_pk_bf16_f32 v16, v22, v23
        v_cvt_pk_bf16_f32 v17, v24, v25
        v_cvt_pk_bf16_f32 v18, v26, v27
        v_cvt_pk_bf16_f32 v19, v28, v29
        v_lshrrev_b32 v20, 16, v30
        ds_write_b128 v11, v[16:19]
        ds_write_b16 v12, v20 offset:1024
        s_waitcnt lgkmcnt(0)
        s_add_u32 s60, s60, 0x7f4a7c15
        s_addc_u32 s61, s61, 0x9e3779b9
        s_cmp_lg_u32 s3, 0
        s_cbranch_scc1 L_A_notag
        v_mov_b32 v11, {TAG}
        v_mov_b32 v12, s60
        v_mov_b32 v13, s61
        ds_write_b64 v11, v[12:13]
        L_A_notag:
        """)
        self.lds_signal(F_X, 4)
        self.stamp(2)
        A("s_cmp_lg_u32 s3, 0\ns_cbranch_scc1 L_A_poll")
        A(f"""
        v_bfe_u32 v3, v0, 2, 2
        v_lshl_add_u32 v4, v2, 2, v3
        v_bfe_u32 v5, v4, 1, 2
        v_lshlrev_b32 v5, 5, v5
        v_lshl_add_u32 v5, v4, 7, v5
        v_and_b32 v6, 3, v0
        v_lshl_add_u32 v5, v6, 3, v5
        v_add_u32 v8, {WQ}, v5
        v_xor_b32 v9, 32, v8
        v_xor_b32 v10, 64, v8
        v_xor_b32 v11, 0x60, v8
        v_mul_u32_u24 v12, 1152, v3
        v_lshl_add_u32 v12, v2, 3, v12
        s_mul_i32 s44, s32, 288
        s_add_u32 s44, s44, {XN}
        v_add_u32 v12, s44, v12
        s_lshl_b32 s44, s30, 15
        s_lshl_b32 s45, s32, 11
        s_add_u32 s44, s44, s45
        s_lshl_b32 s45, s33, 9
        s_add_u32 s44, s44, s45
        s_add_u32 s44, s44, {W_Q}
        v_lshlrev_b32 v13, 13, v2
        v_and_b32 v4, 15, v0
        v_lshl_add_u32 v13, v4, 4, v13
        v_add_u32 v13, s44, v13
        v_mov_b32 v53, s60
        v_mov_b32 v55, s61
        """)
        self.lds_wait(F_X, 4, 4)
        for k in range(4):
            A(f"ds_read2_b64 v[{16+4*k}:{19+4*k}], v12 offset0:{8*k} offset1:{8*k+4}")
        A("ds_read_b64 v[32:33], v12 offset:256\nv_mov_b32 v5, s60\nv_mov_b32 v7, s61")
        self.lds_wait(F_WQ, 8, 14)
        self.stamp(3)
        reads = []
        for ct in range(4):
            base = 56 + 18 * ct
            for k in range(4):
                reads.append(f"ds_read_b64_tr_b16 v[{base+4*k}:{base+4*k+1}], v{8+ct} offset:{4096*k}")
                reads.append(f"ds_read_b64_tr_b16 v[{base+4*k+2}:{base+4*k+3}], v{8+ct} offset:{4096*k+2048}")
            reads.append(f"ds_read_b64_tr_b16 v[{base+16}:{base+17}], v{8+ct} offset:16384")
        pos = 0
        for ct in range(4):
            upto = min(36, 9 * (ct + 1) + 5)
            while pos < upto:
                A(reads[pos]); pos += 1
            base = 56 + 18 * ct
            d = f"v[{36+4*ct}:{39+4*ct}]"
            A(f"s_waitcnt lgkmcnt({5 if ct < 3 else 0})")
            A(f"v_mfma_f32_16x16x16_bf16 {d}, v[32:33], v[{base+16}:{base+17}], 0")
            A("s_nop 5")
            for k in range(4):
                A(f"v_mfma_f32_16x16x32_bf16 {d}, v[{16+4*k}:{19+4*k}], v[{base+4*k}:{base+4*k+3}], {d}")
        if self.opt("noq", 0) < 2: A("""
        v_mov_b32 v4, v36
        v_mov_b32 v6, v40
        v_mov_b32 v52, v44
        global_store_dwordx4 v13, v[4:7], s[28:29] sc1
        s_nop 3
        v_mov_b32 v54, v48
        global_store_dwordx4 v13, v[52:55], s[28:29] offset:256 sc1
        """)
        self.stamp(4)
        self.lds_signal(F_QP, 8)
        A("L_A_poll:")
        A(f"""
        s_lshl_b32 s44, s30, 15
        s_lshl_b32 s45, s32, 13
        s_add_u32 s44, s44, s45
        s_lshl_b32 s45, s3, 9
        s_add_u32 s44, s44, s45
        s_add_u32 s44, s44, {W_Q}
        s_add_u32 s48, s28, s44
        s_addc_u32 s49, s29, 0
        v_lshrrev_b32 v20, 5, v0
        v_and_b32 v3, 31, v0
        v_lshlrev_b32 v21, 12, v20
        v_lshl_add_u32 v21, v3, 4, v21
        v_add_u32 v21, s44, v21
        s_lshl_b32 s44, s3, 7
        s_add_u32 s44, s44, {QS}
        v_and_b32 v3, 15, v0
        v_lshlrev_b32 v22, 1, v3
        v_lshl_add_u32 v22, v20, 5, v22
        v_bfe_u32 v23, v0, 4, 1
        v_lshl_add_u32 v22, v23, 6, v22
        v_add_u32 v22, s44, v22
        v_bfe_u32 v24, v0, 3, 1
        v_lshlrev_b32 v24, 8, v24
        v_lshl_add_u32 v24, v2, 4, v24
        v_add_u32 v24, {QS}, v24
        v_and_b32 v25, 3, v0
        v_bfe_u32 v26, v0, 2, 2
        v_lshl_add_u32 v25, v25, 2, v26
        v_lshlrev_b32 v25, 8, v25
        v_xor_b32 v26, v2, v3
        v_lshl_add_u32 v25, v26, 4, v25
        s_lshl_b32 s44, s3, 15
        v_add_u32 v28, s44, v25
        v_xor_b32 v29, 64, v28
        v_xor_b32 v30, 0x80, v28
        v_xor_b32 v31, 0xc0, v28
        """)
        self.lds_wait(F_QP, 1, 8, sleep=2)
        A(f"""
        {'s_branch L_qskip' if self.opt('noq', 0) else ''}
        L_qsp:
        s_load_dwordx2 s[52:53], s[48:49], 0x1f8 glc
        s_load_dwordx2 s[54:55], s[48:49], 0x9f8 glc
        s_load_dwordx2 s[56:57], s[48:49], 0x11f8 glc
        s_load_dwordx2 s[58:59], s[48:49], 0x19f8 glc
        """)
        self.guard(16)
        A(f"""
        s_sleep {self.opt('qsleep', 2)}
        s_waitcnt lgkmcnt(0)
        s_xor_b32 s53, s53, s61
        s_xor_b32 s55, s55, s61
        s_xor_b32 s57, s57, s61
        s_xor_b32 s59, s59, s61
        s_or_b32 s53, s53, s55
        s_or_b32 s57, s57, s59
        s_or_b32 s53, s53, s57
        s_cbranch_scc1 L_qsp
        L_qpoll:
        global_load_dwordx4 v[8:11], v21, s[28:29] sc1
        global_load_dwordx4 v[12:15], v21, s[28:29] offset:2048 sc1
        """)
        self.guard(64)
        A("s_waitcnt vmcnt(0)")
        self.tagchk([8, 12], 16, 17)
        A("""
        s_cbranch_vccnz L_qpoll
        L_qskip:
        v_add_f32 v8, v8, v12
        v_add_f32 v10, v10, v14
        s_nop 1
        v_permlane32_swap_b32 v8, v10
        v_add_f32 v8, v8, v10
        v_cvt_pk_bf16_f32 v8, v8, v8
        ds_write_b16 v22, v8
        """)
        self.lds_signal(F_Q, 6)
        self.stamp(5)
        self.lds_wait(F_Q, 4, 6)
        for t in range(4):
            A(f"ds_read_b128 v[{8+4*t}:{11+4*t}], v24 offset:{64*t}")
        self.lds_wait(F_K, 8, 6, sleep=1)
        self.stamp(6)

        def kread(tau):
            for t in range(4):
                r = 64 + ((tau % 4) * 4 + t) * 4
                A(f"ds_read_b128 v[{r}:{r+3}], v{28+t} offset:{4096*tau}")
        for tau in range(2):
            kread(tau)
        for tau in range(8):
            if tau + 2 < 8:
                kread(tau + 2)
            out = min(2, 7 - tau) * 4
            for t in range(4):
                r = 64 + ((tau % 4) * 4 + t) * 4
                A(f"s_waitcnt lgkmcnt({out + 3 - t})")
                c = "0" if t == 0 else f"v[{32+4*tau}:{35+4*tau}]"
                A(f"v_mfma_f32_16x16x32_bf16 v[{32+4*tau}:{35+4*tau}], v[{r}:{r+3}], v[{8+4*t}:{11+4*t}], {c}")
        A("s_mov_b32 s44, 0x02020202")
        for tau in range(1, 8):
            A(f"""
            s_mov_b32 exec_lo, s44
            s_mov_b32 exec_hi, s44
            v_mov_b32 v32, v{32+4*tau}
            v_mov_b32 v33, v{33+4*tau}
            v_mov_b32 v34, v{34+4*tau}
            v_mov_b32 v35, v{35+4*tau}
            s_lshl_b32 s44, s44, 1
            """)
        A("s_mov_b64 exec, -1\nv_mov_b32 v20, 0x3db504f3")
        for i in (32, 34):
            self.rb2(i, i + 1)
            A(f"v_mul_f32 v{i}, v{i}, v20\nv_mul_f32 v{i+1}, v{i+1}, v20")
            self.rb2(i, i + 1)
        mx = "v_max_f32_dpp v3, v3, v3"
        A(f"""
        v_max_f32 v3, v32, v33
        v_max3_f32 v3, v3, v34, v35
        v_bfe_u32 v5, v0, 3, 1
        v_lshlrev_b32 v5, 4, v5
        {mx} quad_perm:[1,0,3,2] {DPPF}
        v_add_u32 v5, {MA}, v5
        s_lshl_b32 s44, s3, 2
        {mx} quad_perm:[2,3,0,1] {DPPF}
        v_add_u32 v6, s44, v5
        s_nop 0
        {mx} row_half_mirror {DPPF}
        """)
        self.xlane45(3, 4, "max")
        A("ds_write_b32 v6, v3")
        self.lds_signal(F_M, 8)
        A(f"""
        v_bfe_u32 v7, v0, 3, 1
        v_lshlrev_b32 v7, 11, v7
        v_lshl_add_u32 v7, v2, 6, v7
        v_bfe_u32 v8, v0, 2, 1
        v_lshl_add_u32 v7, v8, 8, v7
        v_and_b32 v8, 3, v0
        v_lshl_add_u32 v7, v8, 4, v7
        s_lshl_b32 s44, s3, 9
        s_add_u32 s44, s44, {PB}
        v_add_u32 v14, s44, v7
        """)
        self.lds_wait(F_M, 4, 8)
        sm = "v_add_f32_dpp v12, v12, v12"
        A(f"""
        ds_read_b128 v[8:11], v5
        v_mov_b32 v20, 0x3fb8aa3b
        s_waitcnt lgkmcnt(0)
        v_max_f32 v3, v8, v9
        v_max3_f32 v3, v3, v10, v11
        v_mul_f32 v4, v3, v20
        v_fma_f32 v32, v32, v20, -v4
        v_fma_f32 v33, v33, v20, -v4
        v_fma_f32 v34, v34, v20, -v4
        v_fma_f32 v35, v35, v20, -v4
        v_exp_f32 v32, v32
        v_exp_f32 v33, v33
        v_exp_f32 v34, v34
        v_exp_f32 v35, v35
        v_add_f32 v12, v32, v33
        v_cvt_pk_bf16_f32 v36, v32, v32
        v_add_f32 v13, v34, v35
        v_cvt_pk_bf16_f32 v37, v33, v33
        v_add_f32 v12, v12, v13
        v_cvt_pk_bf16_f32 v38, v34, v34
        v_cvt_pk_bf16_f32 v39, v35, v35
        {sm} quad_perm:[1,0,3,2] {DPPF}
        ds_write_b128 v14, v[36:39]
        s_nop 0
        {sm} quad_perm:[2,3,0,1] {DPPF}
        s_nop 1
        {sm} row_half_mirror {DPPF}
        """)
        self.xlane45(12, 13, "add")
        A(f"ds_write_b32 v6, v12 offset:{LA-MA}")
        self.lds_signal(F_P, 6, rtn=True)
        A(f"""
        s_getreg_b32 s63, hwreg(HW_REG_XCC_ID, 0, 4)
        s_waitcnt lgkmcnt(0)
        v_readfirstlane_b32 s46, v7
        s_nop 0
        s_cmp_lg_u32 s46, 3
        s_cbranch_scc1 L_A_noml
        ds_read_b128 v[12:15], v5 offset:{LA-MA}
        s_xor_b32 s45, s61, s63
        v_mov_b32 v8, v3
        v_mov_b32 v9, s60
        v_mov_b32 v11, s45
        s_lshl_b32 s44, s35, 7
        s_lshl_b32 s45, s33, 4
        s_add_u32 s44, s44, s45
        s_add_u32 s44, s44, {W_ML}
        v_bfe_u32 v5, v0, 3, 1
        v_lshlrev_b32 v5, 6, v5
        v_add_u32 v5, s44, v5
        s_mov_b64 exec, 0x101
        s_waitcnt lgkmcnt(0)
        v_add_f32 v12, v12, v13
        v_add_f32 v14, v14, v15
        v_add_f32 v10, v12, v14
        global_store_dwordx4 v5, v[8:11], s[28:29] sc1
        s_mov_b64 exec, -1
        L_A_noml:
        """)
        self.stamp(9)
        A(f"""
        s_lshl_b32 s44, s30, 8
        s_lshl_b32 s45, s3, 6
        s_add_u32 s44, s44, s45
        s_mul_i32 s44, s44, 1152
        s_add_u32 s40, s12, s44
        s_addc_u32 s41, s13, 0
        s_mov_b32 s42, {64*1152}
        v_lshrrev_b32 v20, 3, v0
        v_bfe_u32 v3, v0, 4, 2
        v_lshlrev_b32 v3, 1, v3
        v_and_b32 v4, 7, v0
        v_xor_b32 v3, v3, v4
        v_lshlrev_b32 v3, 4, v3
        v_mul_u32_u24 v20, 1152, v20
        v_add_u32 v20, v20, v3
        v_add_u32 v20, 0x400, v20
        v_and_b32 v3, 15, v0
        v_lshlrev_b32 v3, 4, v3
        v_lshlrev_b32 v4, 5, v2
        v_xor_b32 v3, v3, v4
        v_xor_b32 v4, 0x80, v3
        v_mul_u32_u24 v21, 1152, v2
        s_lshl_b32 s45, s33, 8
        v_add3_u32 v22, v21, v4, s45
        v_add3_u32 v21, v21, v3, s45
        v_add_u32 v22, {4*1152}, v22
        s_mov_b32 s56, s3
        s_cmp_eq_u32 s33, s32
        s_cselect_b32 s57, 1, 0
        """)
        self.lds_wait(F_P, 4, 6)
        self.stamp(10)
        wp = self.opt("wo", "")
        A(f"""
        s_lshl_b32 m0, s3, 14
        s_mov_b32 s44, 0
        L_woloop:
        buffer_load_dwordx4 v21, s[40:43], s44 offen {wp} lds
        s_add_u32 m0, m0, 0x400
        s_nop 0
        buffer_load_dwordx4 v22, s[40:43], s44 offen {wp} lds
        s_add_u32 m0, m0, 0x400
        s_add_u32 s44, s44, {8*1152}
        s_cmp_lt_u32 s44, {64*1152}
        s_cbranch_scc1 L_woloop
        s_cmp_eq_u32 s57, 0
        s_cbranch_scc1 L_wo8done
        s_lshl_b32 s44, s3, 13
        s_add_u32 m0, s44, {WO8}
        s_mov_b32 s44, 0
        L_wo8:
        buffer_load_dwordx4 v20, s[40:43], s44 offen {wp} lds
        s_add_u32 m0, m0, 0x400
        s_add_u32 s44, s44, {8*1152}
        s_cmp_lt_u32 s44, {64*1152}
        s_cbranch_scc1 L_wo8
        L_wo8done:
        s_cmp_lg_u32 s3, 0
        s_cbranch_scc1 L_A_wowait
        """)
        if self.opt("noml", 0): A("s_branch L_A_wowait")
        A(f"""
        s_lshl_b32 s44, s35, 13
        s_lshl_b32 s45, s33, 11
        s_add_u32 s44, s44, s45
        s_add_u32 s44, s44, {W_O}
        v_add_u32 v3, s44, v1
        global_load_dwordx4 v[24:27], v3, s[28:29] sc1
        global_load_dwordx4 v[28:31], v3, s[28:29] offset:1024 sc1
        s_lshl_b32 s45, s35, 7
        s_add_u32 s45, s45, {W_ML}
        s_add_u32 s48, s28, s45
        s_addc_u32 s49, s29, 0
        v_subrev_u32 v15, s33, v2
        v_and_b32 v15, 3, v15
        v_lshlrev_b32 v15, 2, v15
        v_add_u32 v15, {FB}, v15
        s_mov_b32 s58, 0
        L_mlpoll:
        s_load_dwordx16 s[4:19], s[48:49], 0 glc
        """)
        self.guard(16)
        A("s_sleep 2\ns_waitcnt lgkmcnt(0)\ns_mov_b32 s44, 0\ns_mov_b32 s47, 0")
        for i in range(4):
            A(f"""
            s_xor_b32 s45, s{4+4*i+1}, s60
            s_or_b32 s44, s44, s45
            s_xor_b32 s45, s{4+4*i+3}, s61
            s_xor_b32 s46, s45, s63
            s_or_b32 s47, s47, s46
            s_lshr_b32 s45, s45, 4
            s_or_b32 s44, s44, s45
            """)
        A(f"""
        s_cbranch_scc1 L_mlpoll
        v_mov_b32 v8, s4
        v_mov_b32 v10, s6
        v_mov_b32 v9, s8
        v_mov_b32 v11, s10
        v_cmp_eq_u32 vcc, 1, v2
        v_mov_b32 v12, s12
        v_mov_b32 v13, s14
        v_cndmask_b32 v8, v8, v9, vcc
        v_cndmask_b32 v10, v10, v11, vcc
        v_cmp_eq_u32 vcc, 2, v2
        v_mov_b32 v9, s16
        v_mov_b32 v11, s18
        v_cndmask_b32 v8, v8, v12, vcc
        v_cndmask_b32 v10, v10, v13, vcc
        v_cmp_eq_u32 vcc, 3, v2
        s_nop 1
        v_cndmask_b32 v8, v8, v9, vcc
        v_cndmask_b32 v10, v10, v11, vcc
        v_mov_b32 v12, v8
        """)
        self.xlane45(12, 13, "max")
        A("""
        v_sub_f32 v12, v8, v12
        v_mul_f32 v12, 0x3fb8aa3b, v12
        v_exp_f32 v12, v12
        s_nop 0
        v_mul_f32 v13, v12, v10
        """)
        self.xlane45(13, 14, "add")
        A(f"""
        v_rcp_f32 v13, v13
        s_add_u32 s48, s48, 64
        s_addc_u32 s49, s49, 0
        v_mul_f32 v12, v12, v13
        ds_write_b32 v15, v12
        v_add_u32 v15, 16, v15
        s_add_u32 s58, s58, 1
        s_cmp_lt_u32 s58, 2
        s_cbranch_scc1 L_mlpoll
        s_cmp_eq_u32 s47, 0
        s_cselect_b32 s44, 2, 1
        v_mov_b32 v8, {F_F}
        v_mov_b32 v9, s44
        ds_write_b32 v8, v9
        """)
        self.stamp(11)
        A("L_A_wowait:\ns_waitcnt vmcnt(0)")
        self.lds_signal(F_WO, 6)
        A("s_branch L_proj")

    def gen_M(self):
        A = self.A
        A(f"""
        L_M2:
        s_mul_i32 s58, s2, 1821
        s_lshr_b32 s58, s58, 16
        s_mul_i32 s59, s58, 36
        s_sub_u32 s59, s2, s59
        s_lshl_b32 s44, s34, 6
        v_add_u32 v13, s44, v0
        v_lshlrev_b32 v14, 2, v13
        v_lshlrev_b32 v13, 4, v13
        v_add_u32 v15, 0x1000, v13
        v_add_u32 v14, 0x2000, v14
        v_and_b32 v92, 7, v0
        v_lshrrev_b32 v3, 5, v0
        v_lshl_add_u32 v92, v92, 1, v3
        s_mul_i32 s44, s58, 1152
        s_lshl_b32 s45, s59, 5
        s_add_u32 s44, s44, s45
        v_lshlrev_b32 v93, 1, v92
        v_add_u32 v93, s44, v93
        v_mov_b32 v95, 0
        """)
        self.lds_wait(F_X, 4, 4, sleep=1)
        for (p, r) in (("s[16:17]", 96), ("s[18:19]", 106), ("s[20:21]", 116)):
            A(f"""
            global_load_dwordx4 v[{r}:{r+3}], v13, {p}
            global_load_dwordx4 v[{r+4}:{r+7}], v15, {p}
            global_load_dword v{r+8}, v14, {p}
            """)
        A("global_load_ushort v94, v93, s[4:5]\nglobal_load_ushort v95, v95, s[22:23]")
        self.read_tag(4)
        A(f"""
        s_mul_i32 s44, s58, 1152
        s_add_u32 s44, s44, {XN}
        v_lshlrev_b32 v14, 1, v0
        v_add_u32 v11, s44, v1
        v_add_u32 v12, s44, v14
        ds_read_b128 v[16:19], v11
        ds_read_u16 v20, v12 offset:1024
        s_waitcnt lgkmcnt(0)
        """)
        self.unpack9(16, 20)
        A("s_call_b64 s[50:51], L_ln")
        A(f"""
        v_lshlrev_b32 v11, 5, v0
        v_add_u32 v11, {HB}, v11
        v_lshlrev_b32 v12, 2, v0
        v_add_u32 v12, {HB}, v12
        ds_write_b128 v11, v[22:25]
        ds_write_b128 v11, v[26:29] offset:16
        ds_write_b32 v12, v30 offset:2048
        s_lshl_b32 s44, s59, 6
        s_add_u32 s44, s44, {HB}
        v_mov_b32 v15, s44
        s_waitcnt vmcnt(0)
        """)
        self.stamp(1)
        for (r, dst) in ((96, 32), (106, 50), (116, 68)):
            for i in range(9):
                A(f"v_lshlrev_b32 v{dst+2*i}, 16, v{r+i}\nv_and_b32 v{dst+2*i+1}, 0xffff0000, v{r+i}")
        K0 = -2.0 * math.sqrt(2.0 / math.pi) * math.log2(math.e)
        K1 = K0 * 0.044715
        A(f"""
        v_mov_b32 v30, {f2u(K0):#x}
        v_mov_b32 v31, {f2u(K1):#x}
        s_lshl_b32 s44, s34, 4
        s_add_u32 s44, s44, {GP}
        v_lshlrev_b32 v14, 2, v2
        v_add_u32 v14, s44, v14
        s_mov_b32 s47, 0
        s_mov_b32 s48, 0x00010001
        s_mov_b32 s49, 0x00010001
        s_waitcnt lgkmcnt(0)
        ds_read_b32 v4, v15
        L_mlp:
        v_mov_b32 v6, 0
        v_mov_b32 v7, 0
        s_waitcnt lgkmcnt(0)
        """)
        for grp in range(3):
            ks = [3 * grp + j for j in range(3)]
            U = lambda j: f"v[{8+2*j}:{9+2*j}]"
            T = lambda j: f"v[{16+2*j}:{17+2*j}]"
            P = lambda base, k: f"v[{base+2*k}:{base+2*k+1}]"
            for j, k in enumerate(ks): A(f"v_pk_fma_f32 {U(j)}, {P(32,k)}, v[4:5], {P(50,k)} op_sel_hi:[1,0,1]")
            for j, k in enumerate(ks): A(f"v_pk_mul_f32 {T(j)}, {U(j)}, {U(j)}")
            for j, k in enumerate(ks): A(f"v_pk_fma_f32 {T(j)}, {T(j)}, v[30:31], v[30:31] op_sel:[0,1,0] op_sel_hi:[1,1,0]")
            for j, k in enumerate(ks): A(f"v_pk_mul_f32 {T(j)}, {T(j)}, {U(j)}")
            for j, k in enumerate(ks): A(f"v_exp_f32 v{16+2*j}, v{16+2*j}\nv_exp_f32 v{17+2*j}, v{17+2*j}")
            for j, k in enumerate(ks): A(f"v_pk_mul_f32 {U(j)}, {U(j)}, {P(68,k)}")
            for j, k in enumerate(ks): A(f"v_pk_add_f32 {T(j)}, {T(j)}, 1.0 op_sel_hi:[1,0]")
            for j, k in enumerate(ks): A(f"v_rcp_f32 v{16+2*j}, v{16+2*j}\nv_rcp_f32 v{17+2*j}, v{17+2*j}")
            A("v_add_u32 v15, 4, v15\nds_read_b32 v4, v15" if grp == 2 else "s_nop 0")
            for j, k in enumerate(ks): A(f"v_pk_fma_f32 v[6:7], {U(j)}, {T(j)}, v[6:7]")
        ins = "v_add_f32_dpp v6, v6, v6"
        A(f"""
        v_add_f32 v6, v6, v7
        s_nop 1
        {ins} quad_perm:[1,0,3,2] {DPPF}
        s_nop 1
        {ins} quad_perm:[2,3,0,1] {DPPF}
        s_nop 1
        {ins} row_half_mirror {DPPF}
        s_nop 1
        {ins} row_mirror {DPPF}
        s_mov_b64 exec, s[48:49]
        ds_write_b32 v14, v6
        s_mov_b64 exec, -1
        v_add_u32 v14, 64, v14
        s_add_u32 s47, s47, 1
        s_cmp_lt_u32 s47, 16
        s_cbranch_scc1 L_mlp
        s_waitcnt lgkmcnt(0)
        """)
        self.lds_signal(F_G, 8)
        self.stamp(2)
        A(f"""
        s_cmp_lg_u32 s34, 0
        s_cbranch_scc1 L_end
        s_setprio 3
        v_lshlrev_b32 v6, 6, v92
        v_add_u32 v6, {GP}, v6
        s_lshl_b32 s44, s2, 11
        s_add_u32 s44, s44, {W_S}
        v_add_u32 v7, s44, v1
        global_load_dwordx4 v[32:35], v7, s[28:29] sc1
        global_load_dwordx4 v[36:39], v7, s[28:29] offset:1024 sc1
        """)
        self.lds_wait(F_G, 4, 8, sleep=1)
        A("""
        ds_read_b128 v[8:11], v6
        ds_read_b128 v[12:15], v6 offset:16
        ds_read_b128 v[16:19], v6 offset:32
        ds_read_b128 v[20:23], v6 offset:48
        s_waitcnt lgkmcnt(0)
        """)
        for i in range(9, 24):
            A(f"v_add_f32 v8, v8, v{i}")
        self.rb(8)
        A("v_lshlrev_b32 v4, 16, v94\nv_lshlrev_b32 v5, 16, v95\nv_add_f32 v8, v8, v5")
        self.rb(8)
        A("""
        v_mul_f32 v9, 0xbfb8aa3b, v8
        v_exp_f32 v9, v9
        s_nop 0
        v_add_f32 v9, 1.0, v9
        v_rcp_f32 v9, v9
        s_nop 0
        v_mul_f32 v5, v8, v9
        """)
        self.rb(5)
        A(f"""
        v_bfe_u32 v8, v0, 3, 2
        v_cmp_eq_u32 s[52:53], 0, v8
        s_waitcnt vmcnt(0)
        """)
        self.stamp(3)
        if self.opt("notail", 0) or self.opt("cut", 0):
            A("s_branch L_end")
        self.lds_wait(F_OB, 1, 8, sleep=1)
        self.stamp(4)
        if self.opt("mask2", 1):
            self.poll2m(7, 1024, 32, 16, "L_spoll", sleep=self.opt("ssleep", 0), pol=self.opt("spol", "sc1").replace("_", " "))
            A("v_add_f32 v10, v32, v36\nv_add_f32 v11, v34, v38")
        else:
            self.poll2(7, 1024, 32, 40, 16, "L_spoll",
                   lambda b: A(f"v_add_f32 v10, v{b}, v{b+4}\nv_add_f32 v11, v{b+2}, v{b+6}"))
        A(f"""
        s_nop 1
        v_permlane32_swap_b32 v10, v11
        v_add_f32 v10, v10, v11
        v_mov_b32 v11, v10
        s_nop 1
        v_permlane16_swap_b32 v10, v11
        v_add_f32 v10, v10, v11
        s_nop 1
        v_add_f32_dpp v10, v10, v10 row_ror:8 {DPPF}
        """)
        self.rb(10)
        A("v_mul_f32 v10, v10, v5")
        self.rb(10)
        A(f"""
        v_add_f32 v10, v10, v4
        v_cvt_pk_bf16_f32 v10, v10, v10
        s_mov_b64 exec, s[52:53]
        global_store_short v93, v10, s[24:25] {self.opt('opol', '').replace('_', ' ')}
        s_mov_b64 exec, -1
        """)
        self.stamp(5)
        A(f"""
        s_cmp_lg_u32 s2, 0
        s_cbranch_scc1 L_end
        v_mov_b32 v8, 0
        v_mov_b32 v10, s60
        v_mov_b32 v11, s61
        s_mov_b64 exec, 1
        global_store_dwordx2 v8, v[10:11], s[28:29] offset:{W_EPOCH}
        s_mov_b64 exec, -1
        """)


if __name__ == "__main__":
    import argparse
    ap = argparse.ArgumentParser()
    ap.add_argument("--out", default="recurrent_scan__sliding_block_cached__mixer_token_mlp__decode.s")
    ap.add_argument("--stamps", action="store_true")
    ap.add_argument("--opt", action="append", default=[])
    a = ap.parse_args()
    opts = dict(x.split("=", 1) for x in a.opt)
    open(a.out, "w").write(G(a.stamps, opts).gen())
```

```python
import sys, math, struct
NAME = "recurrent_scan__sliding_block_cached__mixer_token_mlp__decode_kernel"

KBUF = 0
WQ   = 131072
PB   = WQ
OPART = WQ + 4096
XN   = WQ + 18432
HB   = XN + 4608
QS   = HB + 2304
GP   = QS + 512
INIT = GP + 1024
(F_X, F_Q, F_K, F_M, F_P, F_WO, F_O, F_OB, F_G, F_T, F_WQ, F_QP, F_F, F_S, F_VI) = [INIT + 4 * i for i in range(15)]
TAG  = INIT + 64
FB   = INIT + 128
MA   = INIT + 96
LA   = INIT + 192
OB   = INIT + 512
LDS_BYTES = INIT + 1024
assert LDS_BYTES <= 163840, LDS_BYTES
WO8 = 65536
W_EPOCH = 0
W_Q  = 0x1000
W_ML = 0x90000
W_O  = 0xA0000
W_S  = 0x140000
W_G  = 0x94000
STAMP_OFF = 0x10000000
LIMIT = 0x400000
f2u = lambda f: struct.unpack("<I", struct.pack("<f", f))[0]
DPPF = "row_mask:0xf bank_mask:0xf"


DOC = '''
; ---------------------------------------------------------------------------------------------
; Hand-offs between workgroups go through d_ws as 16-byte granules {data, tagL, data, tagH}; the 64-bit tag
; is (epoch word found in d_ws on entry) + constant, and the new epoch is stored at the end of the launch.
; ---------------------------------------------------------------------------------------------
'''


class G:
    def __init__(self, stamps=False, opts=None):
        self.L = []
        self.stamps = stamps
        self.o = opts or {}
        self.uid = 0

    def opt(self, k, d):
        v = self.o.get(k, d)
        return type(d)(v) if not isinstance(d, str) else v

    def A(self, s):
        for line in s.strip("\n").split("\n"):
            t = line.strip()
            if not t:
                continue
            self.L.append(t if t.endswith(":") else "  " + t)

    def lab(self, p="L"):
        self.uid += 1
        return f"{p}_{self.uid}"

    def stamp(self, i):
        if self.stamps:
            self.A(f"s_memrealtime s[{64+2*i}:{65+2*i}]\ns_waitcnt lgkmcnt(0)")

    def guard(self, inc):
        self.A(f"s_add_u32 s62, s62, {inc}\ns_cmp_gt_u32 s62, {LIMIT:#x}\ns_cbranch_scc1 L_end")

    def lds_wait(self, addr, val, vt, sleep=0):
        l = self.lab("LW")
        self.A(f"v_mov_b32 v{vt}, {addr}\n{l}:\nds_read_b32 v{vt+1}, v{vt}")
        self.guard(1)
        if sleep:
            self.A(f"s_sleep {sleep}")
        self.A(f"""
        s_waitcnt lgkmcnt(0)
        v_readfirstlane_b32 s46, v{vt+1}
        s_nop 0
        s_cmp_lt_u32 s46, {val}
        s_cbranch_scc1 {l}
        """)

    def lds_signal(self, addr, vt, rtn=False):
        self.A(f"v_mov_b32 v{vt}, {addr}\nv_mov_b32 v{vt+1}, 1\ns_mov_b64 exec, 1")
        self.A(f"ds_add_rtn_u32 v{vt+1}, v{vt}, v{vt+1}" if rtn else f"ds_add_u32 v{vt}, v{vt+1}")
        self.A("s_mov_b64 exec, -1")

    def wave_sum(self, v, s):
        ins = f"v_add_f32_dpp v{v}, v{v}, v{v}"
        self.A(f"""
        s_nop 1
        {ins} quad_perm:[1,0,3,2] {DPPF}
        s_nop 1
        {ins} quad_perm:[2,3,0,1] {DPPF}
        s_nop 1
        {ins} row_half_mirror {DPPF}
        s_nop 1
        {ins} row_mirror {DPPF}
        s_nop 1
        {ins} row_bcast:15 row_mask:0xa bank_mask:0xf
        s_nop 1
        {ins} row_bcast:31 row_mask:0xc bank_mask:0xf
        s_nop 0
        v_readlane_b32 s{s}, v{v}, 63
        s_nop 1
        """)

    def rb(self, v):
        self.A(f"v_cvt_pk_bf16_f32 v{v}, v{v}, v{v}\nv_and_b32 v{v}, 0xffff0000, v{v}")

    def rb2(self, a, b):
        self.A(f"v_cvt_pk_bf16_f32 v{b}, v{a}, v{b}\nv_lshlrev_b32 v{a}, 16, v{b}\nv_and_b32 v{b}, 0xffff0000, v{b}")

    def read_tag(self, vt):
        self.A(f"""
        v_mov_b32 v{vt}, {TAG}
        ds_read_b64 v[{vt}:{vt+1}], v{vt}
        s_waitcnt lgkmcnt(0)
        v_readfirstlane_b32 s60, v{vt}
        v_readfirstlane_b32 s61, v{vt+1}
        s_nop 1
        """)

    def xlane45(self, v, t, op):
        self.A(f"""
        v_mov_b32 v{t}, v{v}
        s_nop 1
        v_permlane32_swap_b32 v{v}, v{t}
        v_{op}_f32 v{v}, v{v}, v{t}
        v_mov_b32 v{t}, v{v}
        s_nop 1
        v_permlane16_swap_b32 v{v}, v{t}
        v_{op}_f32 v{v}, v{v}, v{t}
        """)

    def tagchk(self, sets, acc, t):
        first = True
        for b in sets:
            if first:
                self.A(f"v_xor_b32 v{acc}, s60, v{b+1}\nv_xor_b32 v{t}, s61, v{b+3}\nv_or_b32 v{acc}, v{acc}, v{t}")
                first = False
            else:
                self.A(f"v_xor_b32 v{t}, s60, v{b+1}\nv_xor_b32 v{t+1}, s61, v{b+3}\nv_or3_b32 v{acc}, v{acc}, v{t}, v{t+1}")
        self.A(f"v_cmp_ne_u32 vcc, 0, v{acc}")

    def poll2(self, vaddr, off2, A0, B0, acc, name, consume, pre=None):
        A = self.A
        ld = lambda r: (f"global_load_dwordx4 v[{r}:{r+3}], v{vaddr}, s[28:29] sc1\n"
                        f"global_load_dwordx4 v[{r+4}:{r+7}], v{vaddr}, s[28:29] offset:{off2} sc1")
        A(ld(A0))
        if pre: pre()
        A(f"{name}:\n" + ld(B0))
        self.guard(64)
        A("s_waitcnt vmcnt(2)")
        self.tagchk([A0, A0 + 4], acc, acc + 1)
        A(f"s_cbranch_vccz {name}_a\n" + ld(A0) + "\ns_waitcnt vmcnt(2)")
        self.tagchk([B0, B0 + 4], acc, acc + 1)
        A(f"s_cbranch_vccnz {name}")
        consume(B0)
        A(f"s_branch {name}_ok\n{name}_a:")
        consume(A0)
        A(f"{name}_ok:")

    def poll2m(self, vaddr, off2, A0, acc, name, pre=None, sleep=0, pol="sc1"):
        A = self.A
        ld = (f"global_load_dwordx4 v[{A0}:{A0+3}], v{vaddr}, s[28:29] {pol}\n"
              f"global_load_dwordx4 v[{A0+4}:{A0+7}], v{vaddr}, s[28:29] offset:{off2} {pol}")
        A(ld)
        if pre: pre()
        A(f"{name}:")
        if sleep: A(f"s_sleep {sleep}")
        A(ld)
        self.guard(64)
        A("s_waitcnt vmcnt(2)")
        self.tagchk([A0, A0 + 4], acc, acc + 1)
        A(f"s_mov_b64 exec, vcc\ns_cbranch_vccnz {name}\ns_mov_b64 exec, -1")

    def frag_reads(self):
        A = self.A
        for d in range(3):
            A(f"v_mov_b32 v4, v{51+d}")
            for k in range(2):
                r = 96 + (d * 2 + k) * 4
                A(f"""
                ds_read_b64_tr_b16 v[{r}:{r+1}], v4
                v_add_u32 v4, s{57+d}, v4
                ds_read_b64_tr_b16 v[{r+2}:{r+3}], v4
                """)
                if k == 0:
                    A(f"v_add_u32 v4, s{57+d}, v4")
        A(f"""
        v_mov_b32 v61, s60
        v_mov_b32 v63, s61
        v_mov_b32 v4, {F_OB}
        v_cndmask_b32 v61, v61, v63, s[54:55]
        """)

    def gen(self):
        A = self.A
        for line in open("recurrent_scan__sliding_block_cached__mixer_token_mlp__decode.s.ref").read().split("\n"):
            if line.startswith("; @launch"):
                self.L.append(f"; @launch grid=(256,1,1) block=(1024,1,1) lds={LDS_BYTES}")
                break
            self.L.append(line)
        self.L += DOC.strip("\n").split("\n")
        self.L += ['.amdgcn_target "amdgcn-amd-amdhsa--gfx950"', ".text", f".globl {NAME}", ".p2align 8",
                   f".type {NAME},@function", f"{NAME}:"]
        if self.stamps:
            A("s_memrealtime s[64:65]")
            for i in range(66, 96):
                A(f"s_mov_b32 s{i}, 0")
        A(f"""
        s_cmp_ge_u32 s2, 256
        s_cbranch_scc1 L_exit
        s_load_dwordx16 s[4:19], s[0:1], 0
        s_load_dwordx8 s[20:27], s[0:1], 64
        s_load_dwordx2 s[28:29], s[0:1], 96
        v_lshrrev_b32 v1, 6, v0
        v_and_b32 v0, 63, v0
        v_readfirstlane_b32 s3, v1
        s_and_b32 s30, s2, 15
        s_lshr_b32 s31, s2, 4
        {'s_xor_b32 s3, s3, 8' if self.opt('sfirst', 0) else ''}
        s_lshr_b32 s32, s31, 2
        s_and_b32 s33, s31, 3
        s_lshl_b32 s35, s32, 4
        s_add_u32 s35, s35, s30
        s_mul_i32 s96, s31, 13
        s_lshr_b32 s96, s96, 6
        s_sub_u32 s96, s31, s96
        s_sub_u32 s96, s96, 1
        s_lshl_b32 s96, s96, 4
        s_add_u32 s96, s96, s30
        s_cmp_eq_u32 s32, s33
        s_cselect_b32 s97, 0, s96
        s_cmov_b32 s96, 255
        {'s_mov_b32 s96, s2' if self.opt('cmap', 1) == 0 else ''}
        {'s_mov_b32 s97, s2' if self.opt('cmap', 1) == 0 else ''}
        s_mov_b32 s62, 0
        s_mov_b32 s39, 0x20000
        s_mov_b32 s43, 0x20000
        v_lshlrev_b32 v1, 4, v0
        v_lshrrev_b32 v2, 4, v0
        s_cmp_lt_u32 s3, 8
        s_cbranch_scc0 L_S
        s_cmp_lt_u32 s3, 4
        s_cbranch_scc0 L_M
        """)
        A(f"""
        s_setprio {self.opt('prioA', 3)}
        s_mul_i32 s44, s3, 1152
        s_movk_i32 s38, 1152
        v_lshlrev_b32 v14, 1, v0
        s_cmp_lg_u32 s3, 0
        s_cbranch_scc1 L_noinit
        v_mov_b32 v4, 0
        v_mov_b32 v5, 0
        v_mov_b32 v6, 0
        v_mov_b32 v7, 0
        v_add_u32 v3, {INIT}, v1
        ds_write_b128 v3, v[4:7]
        L_noinit:
        s_waitcnt lgkmcnt(0)
        s_add_u32 s36, s4, s44
        s_addc_u32 s37, s5, 0
        buffer_load_dwordx4 v[16:19], v1, s[36:39], 0 offen
        buffer_load_ushort v20, v14, s[36:39], 0 offen offset:1024
        s_load_dwordx2 s[60:61], s[28:29], {W_EPOCH}
        s_barrier
        s_branch L_A
        """)
        A(f"""
        L_M:
        s_setprio {self.opt('prioM', 2)}
        s_sub_u32 s34, s3, 4
        s_lshr_b32 s46, s2, 3
        s_waitcnt lgkmcnt(0)
        s_cmp_lg_u32 s34, 3
        s_cbranch_scc1 L_nowarmc
        s_cmp_lt_u32 s46, (L_code_end-{NAME})>>10
        s_cbranch_scc0 L_nowarmc
        s_getpc_b64 s[44:45]
        L_pc:
        s_sub_u32 s44, s44, L_pc-{NAME}
        s_subb_u32 s45, s45, 0
        s_lshl_b32 s46, s46, 10
        v_add_u32 v3, s46, v1
        global_load_dwordx4 v[88:91], v3, s[44:45]
        L_nowarmc:
        s_cmp_lg_u32 s34, 2
        s_cbranch_scc1 L_nowarmw
        s_cmp_lt_u32 s46, 27
        s_cbranch_scc0 L_nowarmw
        s_mov_b64 s[44:45], s[16:17]
        s_cmp_lt_u32 s46, 9
        s_cbranch_scc1 L_warmw
        s_mov_b64 s[44:45], s[18:19]
        s_sub_u32 s46, s46, 9
        s_cmp_lt_u32 s46, 9
        s_cbranch_scc1 L_warmw
        s_mov_b64 s[44:45], s[20:21]
        s_sub_u32 s46, s46, 9
        L_warmw:
        s_lshl_b32 s46, s46, 10
        v_add_u32 v3, s46, v1
        global_load_dwordx4 v[88:91], v3, s[44:45]
        L_nowarmw:
        s_barrier
        s_cmp_lt_u32 s96, {0 if self.opt('nom', 0) else 144}
        s_cbranch_scc0 L_end
        s_branch L_M2
        """)
        A("L_S:")
        self.gen_S()
        self.gen_proj()
        self.gen_A()
        self.gen_LN()
        self.gen_M()
        A("L_end:")
        if self.stamps:
            A(f"""
            s_mov_b64 exec, -1
            s_waitcnt lgkmcnt(0)
            s_memrealtime s[94:95]
            s_lshl_b32 s44, s2, 4
            s_add_u32 s44, s44, s3
            s_lshl_b32 s44, s44, 7
            s_add_u32 s44, s44, {STAMP_OFF}
            s_add_u32 s28, s28, s44
            s_addc_u32 s29, s29, 0
            s_waitcnt vmcnt(0) lgkmcnt(0)
            """)
            for i in range(32):
                A(f"v_writelane_b32 v6, s{64+i}, {i}")
            A("""
            v_lshlrev_b32 v4, 2, v0
            s_mov_b32 exec_hi, 0
            global_store_dword v4, v6, s[28:29]
            """)
        A("L_exit:")
        A("s_endpgm")
        A("L_code_end:")
        self.L += ['.section .rodata,"a"', ".p2align 6", f".amdhsa_kernel {NAME}",
                   "  .amdhsa_next_free_vgpr 128", "  .amdhsa_next_free_sgpr 100", "  .amdhsa_accum_offset 128",
                   "  .amdhsa_group_segment_fixed_size 0", "  .amdhsa_kernarg_size 104", "  .amdhsa_user_sgpr_count 2",
                   "  .amdhsa_user_sgpr_kernarg_segment_ptr 1", "  .amdhsa_system_sgpr_workgroup_id_x 1",
                   ".end_amdhsa_kernel"]
        if self.opt("kvpol", "nt") == "def":
            self.L = [l.replace("offen nt", "offen") for l in self.L]
        return "\n".join(self.L) + "\n"

    def gen_S(self):
        A = self.A
        D = self.opt("depth", 4)
        A(f"""
        s_setprio {self.opt('prioS', 1)}
        s_sub_u32 s34, s3, 8
        s_mul_i32 s44, s32, {144*8192}
        s_lshl_b32 s45, s30, 9
        s_add_u32 s44, s44, s45
        s_lshl_b32 s45, s33, 7
        s_add_u32 s44, s44, s45
        s_mov_b32 s42, {143*8192+128}
        v_lshrrev_b32 v4, 3, v0
        v_bfe_u32 v3, v0, 4, 2
        v_lshlrev_b32 v3, 1, v3
        v_and_b32 v5, 7, v0
        v_xor_b32 v3, v3, v5
        v_lshlrev_b32 v3, 4, v3
        v_lshl_add_u32 v4, v4, 13, v3
        s_lshl_b32 s45, s34, 10
        s_add_u32 m0, s45, {WQ}
        s_lshl_b32 s45, s34, 16
        s_lshl_b32 s46, s35, 21
        s_lshl_b32 s47, s33, 17
        s_add_u32 s46, s46, s47
        s_add_u32 s46, s46, {6144*256}
        s_mov_b32 s38, 0x20000
        s_lshl_b32 s47, s34, 14
        s_add_u32 s47, s47, s46
        s_mul_i32 s51, s2, 5
        s_add_u32 s51, s51, s31
        v_lshlrev_b32 v3, 6, v2
        v_xor_b32 v3, v1, v3
        v_mov_b32 v5, {F_T}
        v_mov_b32 v6, 1
        s_mov_b32 s50, s34
        s_waitcnt lgkmcnt(0)
        s_add_u32 s40, s10, s44
        s_addc_u32 s41, s11, 0
        s_add_u32 s36, s6, s46
        s_addc_u32 s37, s7, 0
        L_wqloop:
        buffer_load_dwordx4 v4, s[40:43], s45 offen nt lds
        s_add_u32 m0, m0, 0x2000
        s_add_u32 s45, s45, 0x80000
        s_cmp_lt_u32 s45, {18*65536}
        s_cbranch_scc1 L_wqloop
        s_add_u32 s40, s8, s47
        s_addc_u32 s41, s9, 0
        s_movk_i32 s42, 0x4000
        """)
        self.stamp(1)
        A(f"""
        L_kloop:
        s_and_b32 s44, s50, 7
        s_lshr_b32 s45, s50, 3
        s_mul_i32 s46, s44, 3
        s_add_u32 s46, s46, s51
        s_add_u32 s46, s46, s45
        s_and_b32 s46, s46, 15
        s_lshl_b32 s44, s44, 4
        s_add_u32 s46, s46, s44
        s_lshl_b32 s46, s46, 10
        s_add_u32 s44, s44, s45
        s_lshl_b32 m0, s44, 10
        s_and_b32 s47, s45, 3
        s_lshl_b32 s47, s47, 4
        v_xor_b32 v4, s47, v3
        s_waitcnt vmcnt({D-1})
        buffer_load_dwordx4 v4, s[36:39], s46 offen nt lds
        s_cmp_lt_u32 s50, 8
        s_cbranch_scc0 L_knobar
        s_barrier
        L_knobar:
        s_cmp_lt_u32 s50, {8*(D-2)}
        s_cbranch_scc0 L_kdyn
        s_add_u32 s50, s50, 8
        s_branch L_kloop
        L_kdyn:
        s_cmp_lt_u32 s50, {8*(D-1)}
        s_cbranch_scc0 L_kdyn2
        s_add_u32 s50, s50, 8
        s_mov_b64 exec, 1
        ds_add_rtn_u32 v7, v5, v6
        s_mov_b64 exec, -1
        s_branch L_kloop
        L_kdyn2:
        s_waitcnt lgkmcnt(0)
        v_readfirstlane_b32 s49, v7
        s_mov_b64 exec, 1
        ds_add_rtn_u32 v7, v5, v6
        s_cmp_lt_u32 s50, {8*D}
        s_cbranch_scc0 L_knosig
        ds_add_u32 v5, v6 offset:{F_WQ-F_T}
        L_knosig:
        s_mov_b64 exec, -1
        s_add_u32 s50, s49, {8*D}
        s_cmp_lt_u32 s50, 128
        s_cbranch_scc1 L_kloop
        s_mul_i32 s46, s34, 3
        s_add_u32 s46, s46, s51
        s_and_b32 s46, s46, 15
        s_lshl_b32 s46, s46, 10
        s_movk_i32 s48, 0x400
        s_movk_i32 s49, 0x3fff
        s_waitcnt lgkmcnt(0)
        """)
        self.stamp(2)
        VB = 64
        DV = self.opt("depthv", D)
        HP = self.opt("hipace", 5)
        for n in range(16):
            if n <= D - 1 or n < self.opt("vpaced", 4):
                A(f"s_waitcnt vmcnt({(D if n <= D - 1 else DV)-1})")
            elif HP and n < self.opt("hipn", 12):
                l = self.lab("HP")
                A(f"s_cbranch_vccnz {l}\ns_waitcnt vmcnt({HP-1})\n{l}:")
            if n == D - 1:
                self.lds_signal(F_K, 4)
            A(f"""
            buffer_load_dwordx4 v[{VB+4*n}:{VB+4*n+3}], v1, s[40:43], s46 offen nt
            s_add_u32 s46, s46, s48
            s_and_b32 s46, s46, s49
            """)
            if n == D - 1:
                self.S_setup()
                if HP: A("s_cmp_lt_u32 s97, 144\ns_cselect_b64 vcc, -1, 0")
        if self.opt("wolast", 0):
            self.lds_signal(F_VI, 4)
        self.stamp(3)
        self.lds_wait(F_P, 4, 4, sleep=1)
        self.stamp(4)
        A(f"""
        s_setprio 3
        ds_read_b128 v[16:19], v12
        ds_read_b128 v[20:23], v12 offset:16
        ds_read_b128 v[24:27], v12 offset:32
        ds_read_b128 v[28:31], v12 offset:48
        """)
        self.read_tag(4)
        A(f"""
        v_mov_b32 v41, s60
        v_mov_b32 v43, s61
        v_mov_b32 v45, s60
        v_mov_b32 v47, s61
        """)
        for n in range(16):
            a = 36 if n % 2 == 0 else 4
            A(f"""
            v_and_b32 v{a}, v{16+n}, v8
            v_and_b32 v{a+1}, v{16+n}, v9
            v_and_b32 v{a+2}, v{16+n}, v10
            v_and_b32 v{a+3}, v{16+n}, v11
            s_waitcnt vmcnt({15-n})
            s_nop 0
            v_mfma_f32_16x16x32_bf16 v[32:35], v[{a}:{a+3}], v[{VB+4*n}:{VB+4*n+3}], v[32:35]
            """)
        self.stamp(9)
        A(f"""
        v_mov_b32 v8, {F_O}
        v_mov_b32 v9, 1
        s_nop 5
        ds_write_b128 v15, v[32:35]
        s_mov_b64 exec, 1
        ds_add_rtn_u32 v9, v8, v9
        s_mov_b64 exec, -1
        ds_read_b32 v10, v8 offset:{F_F-F_O}
        ds_read_b128 v[36:39], v59
        """)
        for i in range(8):
            A(f"ds_read_b128 v[{64+4*i}:{67+4*i}], v14 offset:{1024*i}")
        A("""
        s_waitcnt lgkmcnt(9)
        v_readfirstlane_b32 s47, v9
        v_readfirstlane_b32 s46, v10
        s_nop 0
        s_cmp_lg_u32 s47, 7
        s_cbranch_scc1 L_S_notlast
        """)
        if self.opt("notail", 0): A("s_branch L_end")
        ld = "\n".join(f"global_load_dwordx4 v[{96+4*i}:{99+4*i}], v{48+i}, s[28:29] sc1" for i in range(3))
        A(ld)
        for i in range(0, 8, 2):
            A(f"""
            s_waitcnt lgkmcnt({6-i})
            v_pk_add_f32 v[{64+4*i}:{65+4*i}], v[{64+4*i}:{65+4*i}], v[{68+4*i}:{69+4*i}]
            v_pk_add_f32 v[{66+4*i}:{67+4*i}], v[{66+4*i}:{67+4*i}], v[{70+4*i}:{71+4*i}]
            """)
            if i in (2, 6):
                b = 64 + 4 * (i - 2)
                A(f"""
                v_pk_add_f32 v[{b}:{b+1}], v[{b}:{b+1}], v[{b+8}:{b+9}]
                v_pk_add_f32 v[{b+2}:{b+3}], v[{b+2}:{b+3}], v[{b+10}:{b+11}]
                """)
        A(f"""
        v_pk_add_f32 v[64:65], v[64:65], v[80:81]
        v_pk_add_f32 v[66:67], v[66:67], v[82:83]
        s_cmp_eq_u32 s46, {2 if self.opt('local', 1) else 99}
        v_cvt_pk_bf16_f32 v40, v64, v65
        v_cvt_pk_bf16_f32 v42, v66, v67
        s_cbranch_scc1 L_opub_local
        global_store_dwordx4 v13, v[40:43], s[28:29] sc1
        s_branch L_opub_done
        L_opub_local:
        global_store_dwordx4 v13, v[40:43], s[28:29]
        L_opub_done:
        """)
        self.stamp(5)
        A("s_cmp_lg_u32 s46, 0\ns_cbranch_scc1 L_fok")
        self.lds_wait(F_F, 1, 10)
        A(f"""
        ds_read_b128 v[36:39], v59
        s_waitcnt lgkmcnt(0)
        L_fok:
        v_mul_f32 v64, v64, v36
        v_mul_f32 v65, v65, v36
        v_mul_f32 v66, v66, v36
        v_mul_f32 v67, v67, v36
        v_mov_b32 v9, 1
        L_opoll:
        """)
        A(ld)
        self.guard(64)
        A("s_waitcnt vmcnt(3)")
        self.tagchk([96 + 4 * i for i in range(3)], 16, 17)
        A("s_cbranch_vccnz L_opoll")
        for i in range(3):
            A(f"""
            v_lshlrev_b32 v16, 16, v{96+4*i}
            v_and_b32 v17, 0xffff0000, v{96+4*i}
            v_lshlrev_b32 v18, 16, v{98+4*i}
            v_and_b32 v19, 0xffff0000, v{98+4*i}
            v_fmac_f32 v64, v16, v{37+i}
            v_fmac_f32 v65, v17, v{37+i}
            v_fmac_f32 v66, v18, v{37+i}
            v_fmac_f32 v67, v19, v{37+i}
            """)
        A(f"""
        v_cvt_pk_bf16_f32 v64, v64, v65
        v_cvt_pk_bf16_f32 v65, v66, v67
        ds_write_b64 v58, v[64:65]
        s_mov_b64 exec, 1
        ds_write_b32 v8, v9 offset:{F_OB-F_O}
        s_mov_b64 exec, -1
        """)
        self.stamp(12)
        A(f"""
        s_branch L_end
        L_S_notlast:
        s_cmp_lt_u32 s47, 4
        s_cbranch_scc0 L_end
        s_add_u32 s56, s47, 4
        s_mov_b32 s57, 0
        """)

    def S_setup(self):
        A = self.A
        A(f"""
        v_and_b32 v4, 1, v0
        v_cmp_eq_u32 vcc, 1, v4
        v_mov_b32 v5, 0xffff
        v_mov_b32 v6, 0xffff0000
        v_bfe_u32 v4, v0, 1, 2
        v_cndmask_b32 v5, v5, v6, vcc
        """)
        for i in range(4):
            A(f"v_cmp_eq_u32 vcc, {i}, v4\ns_nop 1\nv_cndmask_b32 v{8+i}, 0, v5, vcc")
        A(f"""
        v_bfe_u32 v4, v0, 3, 1
        v_lshlrev_b32 v4, 11, v4
        v_lshl_add_u32 v4, v2, 6, v4
        s_lshl_b32 s44, s34, 8
        s_add_u32 s44, s44, {PB}
        v_add_u32 v12, s44, v4
        v_mov_b32 v32, 0
        v_mov_b32 v33, 0
        v_mov_b32 v34, 0
        v_mov_b32 v35, 0
        v_and_b32 v5, 15, v0
        s_lshl_b32 s44, s35, 12
        s_add_u32 s44, s44, {W_O}
        s_lshl_b32 s45, s33, 10
        s_add_u32 s47, s45, s44
        v_add_u32 v13, s47, v1
        """)
        for i in range(3):
            A(f"""
            s_add_u32 s45, s45, 0x400
            s_and_b32 s45, s45, 0xfff
            s_add_u32 s47, s45, s44
            v_add_u32 v{48+i}, s47, v1
            """)
        A(f"""
        v_add_u32 v14, {OPART}, v1
        v_lshrrev_b32 v4, 5, v0
        v_lshlrev_b32 v59, 4, v4
        v_add_u32 v59, {FB}, v59
        v_lshlrev_b32 v4, 9, v4
        v_lshl_add_u32 v4, v5, 5, v4
        v_bfe_u32 v5, v0, 4, 1
        v_lshl_add_u32 v4, v5, 4, v4
        s_lshl_b32 s44, s34, 10
        s_add_u32 s44, s44, {OPART}
        v_add_u32 v15, s44, v4
        v_lshrrev_b32 v6, 3, v0
        v_lshlrev_b32 v6, 6, v6
        v_and_b32 v7, 3, v0
        v_lshl_add_u32 v6, v7, 4, v6
        v_bfe_u32 v7, v0, 2, 1
        v_lshl_add_u32 v6, v7, 3, v6
        v_add_u32 v58, {OB}, v6
        """)

    def gen_proj(self):
        A = self.A
        A("L_proj:")
        if self.opt("notail", 0):
            A("s_branch L_end")
        A(f"""
        s_setprio 0
        v_bfe_u32 v5, v0, 2, 2
        v_lshl_add_u32 v6, v2, 2, v5
        v_and_b32 v7, 3, v0
        v_lshlrev_b32 v7, 3, v7
        v_and_b32 v8, 7, v6
        v_xor_b32 v8, s56, v8
        v_lshl_add_u32 v8, v8, 5, v7
        v_lshl_add_u32 v50, v6, 8, v8
        v_bfe_u32 v8, v6, 1, 2
        v_xor_b32 v8, s3, v8
        v_and_b32 v8, 3, v8
        v_lshl_add_u32 v8, v8, 5, v7
        v_lshl_add_u32 v51, v6, 7, v8
        v_add_u32 v51, {WO8}, v51
        v_lshlrev_b32 v48, 4, v2
        v_add_u32 v48, {OB}, v48
        s_mul_i32 s44, s32, 36
        s_lshl_b32 s45, s33, 3
        s_add_u32 s45, s45, s56
        s_add_u32 s45, s45, s44
        s_lshl_b32 s45, s45, 11
        s_add_u32 s44, s44, s3
        s_add_u32 s44, s44, 32
        s_lshl_b32 s44, s44, 11
        v_mov_b32 v6, s45
        v_mov_b32 v7, s44
        v_cmp_eq_u32 s[54:55], 1, v2
        v_and_b32 v8, 1, v0
        v_cmp_eq_u32 vcc, 1, v8
        v_cndmask_b32 v6, v6, v7, s[54:55]
        v_mov_b32 v61, s60
        v_mov_b32 v63, s61
        v_cndmask_b32 v61, v61, v63, vcc
        s_lshl_b32 s44, s30, 7
        s_add_u32 s44, s44, {W_S}
        v_and_b32 v7, 15, v0
        v_lshl_add_u32 v6, v7, 3, v6
        v_add_u32 v54, s44, v6
        """)
        self.lds_wait(F_WO, 4, 4, sleep=1)
        self.stamp(6)
        for k in range(8):
            if k == 4: A("s_waitcnt lgkmcnt(4)")
            A(f"ds_read_b64_tr_b16 v[{64+4*k}:{65+4*k}], v50 offset:{8192*k}")
            A(f"ds_read_b64_tr_b16 v[{66+4*k}:{67+4*k}], v50 offset:{8192*k+4096}")
        A("s_cmp_eq_u32 s57, 0\ns_cbranch_scc1 L_no8a\ns_waitcnt lgkmcnt(0)")
        for k in range(8):
            if k == 4: A("s_waitcnt lgkmcnt(4)")
            A(f"ds_read_b64_tr_b16 v[{96+4*k}:{97+4*k}], v51 offset:{4096*k}")
            A(f"ds_read_b64_tr_b16 v[{98+4*k}:{99+4*k}], v51 offset:{4096*k+2048}")
        A("L_no8a:\ns_waitcnt lgkmcnt(0)")
        self.lds_wait(F_O, 8, 6, sleep=1)
        A(f"""
        v_mov_b32 v4, {F_OB}
        L_obwait:
        ds_read_b32 v5, v4
        ds_read_b128 v[16:19], v48
        ds_read_b128 v[20:23], v48 offset:64
        """)
        self.guard(1)
        A("""
        s_waitcnt lgkmcnt(2)
        v_readfirstlane_b32 s46, v5
        s_nop 0
        s_cmp_eq_u32 s46, 0
        s_cbranch_scc1 L_obwait
        """)
        for k in range(2, 8):
            A(f"ds_read_b128 v[{16+4*k}:{19+4*k}], v48 offset:{64*k}")
        A("s_cmp_eq_u32 s57, 0\ns_cbranch_scc0 L_proj2")
        for k in range(8):
            A(f"s_waitcnt lgkmcnt({min(6, 7-k)})")
            c = "0" if k == 0 else "v[8:11]"
            A(f"v_mfma_f32_16x16x32_bf16 v[8:11], v[{16+4*k}:{19+4*k}], v[{64+4*k}:{67+4*k}], {c}")
        A("""
        s_mov_b64 exec, 0xffff
        s_nop 6
        v_mov_b32 v60, v8
        global_store_dwordx2 v54, v[60:61], s[28:29] sc1
        s_mov_b64 exec, -1
        """)
        self.stamp(8)
        A("s_branch L_end\nL_proj2:")
        for k in range(8):
            A(f"s_waitcnt lgkmcnt({min(6, 7-k)})")
            c = "0" if k == 0 else "v[8:11]"
            c2 = "0" if k == 0 else "v[12:15]"
            A(f"v_mfma_f32_16x16x32_bf16 v[8:11], v[{16+4*k}:{19+4*k}], v[{64+4*k}:{67+4*k}], {c}")
            A(f"v_mfma_f32_16x16x32_bf16 v[12:15], v[{16+4*k}:{19+4*k}], v[{96+4*k}:{99+4*k}], {c2}")
        A("""
        s_mov_b32 exec_hi, 0
        s_nop 6
        v_cndmask_b32 v60, v8, v12, s[54:55]
        global_store_dwordx2 v54, v[60:61], s[28:29] sc1
        s_mov_b64 exec, -1
        """)
        self.stamp(8)
        A("s_branch L_end")

    def gen_LN(self):
        A = self.A
        A("L_ln:")
        A("""
        v_add_f32 v31, v22, v23
        v_add_f32 v32, v24, v25
        v_add_f32 v33, v26, v27
        v_add_f32 v31, v31, v32
        v_add_f32 v32, v28, v29
        v_add_f32 v33, v33, v30
        v_add_f32 v31, v31, v32
        v_add_f32 v31, v31, v33
        """)
        self.wave_sum(31, 44)
        A("v_mov_b32 v31, 0x3ae38e39\nv_mul_f32 v31, s44, v31\nv_mov_b32 v32, 0")
        for i in range(22, 31):
            A(f"v_sub_f32 v33, v{i}, v31\nv_fmac_f32 v32, v33, v33")
        self.wave_sum(32, 45)
        self.rb(31)
        A("v_mov_b32 v32, 0x3ae38e39\nv_mul_f32 v32, s45, v32")
        self.rb(32)
        A("v_add_f32 v32, 0x3727c5ac, v32")
        self.rb(32)
        A("v_sqrt_f32 v32, v32\ns_nop 0")
        self.rb(32)
        A("v_rcp_f32 v32, v32")
        for i in range(22, 31):
            A(f"v_sub_f32 v{i}, v{i}, v31")
        for i in range(22, 30, 2):
            self.rb2(i, i + 1)
        self.rb(30)
        for i in range(22, 31):
            A(f"v_mul_f32 v{i}, v{i}, v32")
        for i in range(22, 30, 2):
            self.rb2(i, i + 1)
        self.rb(30)
        A("s_setpc_b64 s[50:51]")

    def unpack9(self, src, s9):
        for i in range(4):
            self.A(f"v_lshlrev_b32 v{22+2*i}, 16, v{src+i}\nv_and_b32 v{23+2*i}, 0xffff0000, v{src+i}")
        self.A(f"v_lshlrev_b32 v30, 16, v{s9}")

    def gen_A(self):
        A = self.A
        A(f"""
        L_A:
        s_add_u32 s44, s44, {XN}
        v_add_u32 v11, s44, v1
        v_add_u32 v12, s44, v14
        s_waitcnt vmcnt(0)
        """)
        self.stamp(1)
        self.unpack9(16, 20)
        A("s_call_b64 s[50:51], L_ln")
        A(f"""
        v_cvt_pk_bf16_f32 v16, v22, v23
        v_cvt_pk_bf16_f32 v17, v24, v25
        v_cvt_pk_bf16_f32 v18, v26, v27
        v_cvt_pk_bf16_f32 v19, v28, v29
        v_lshrrev_b32 v20, 16, v30
        ds_write_b128 v11, v[16:19]
        ds_write_b16 v12, v20 offset:1024
        s_waitcnt lgkmcnt(0)
        s_add_u32 s60, s60, 0x7f4a7c15
        s_addc_u32 s61, s61, 0x9e3779b9
        s_cmp_lg_u32 s3, 0
        s_cbranch_scc1 L_A_notag
        v_mov_b32 v11, {TAG}
        v_mov_b32 v12, s60
        v_mov_b32 v13, s61
        ds_write_b64 v11, v[12:13]
        L_A_notag:
        """)
        self.lds_signal(F_X, 4)
        self.stamp(2)
        A("s_cmp_lg_u32 s3, 0\ns_cbranch_scc1 L_A_poll")
        A(f"""
        v_bfe_u32 v3, v0, 2, 2
        v_lshl_add_u32 v4, v2, 2, v3
        v_bfe_u32 v5, v4, 1, 2
        v_lshlrev_b32 v5, 5, v5
        v_lshl_add_u32 v5, v4, 7, v5
        v_and_b32 v6, 3, v0
        v_lshl_add_u32 v5, v6, 3, v5
        v_add_u32 v8, {WQ}, v5
        v_xor_b32 v9, 32, v8
        v_xor_b32 v10, 64, v8
        v_xor_b32 v11, 0x60, v8
        v_mul_u32_u24 v12, 1152, v3
        v_lshl_add_u32 v12, v2, 3, v12
        s_mul_i32 s44, s32, 288
        s_add_u32 s44, s44, {XN}
        v_add_u32 v12, s44, v12
        s_lshl_b32 s44, s30, 15
        s_lshl_b32 s45, s32, 11
        s_add_u32 s44, s44, s45
        s_lshl_b32 s45, s33, 9
        s_add_u32 s44, s44, s45
        s_add_u32 s44, s44, {W_Q}
        v_lshlrev_b32 v13, 13, v2
        v_and_b32 v4, 15, v0
        v_lshl_add_u32 v13, v4, 4, v13
        v_add_u32 v13, s44, v13
        v_mov_b32 v53, s60
        v_mov_b32 v55, s61
        """)
        self.lds_wait(F_X, 4, 4)
        for k in range(4):
            A(f"ds_read2_b64 v[{16+4*k}:{19+4*k}], v12 offset0:{8*k} offset1:{8*k+4}")
        A("ds_read_b64 v[32:33], v12 offset:256\nv_mov_b32 v5, s60\nv_mov_b32 v7, s61")
        self.lds_wait(F_WQ, 8, 14)
        self.stamp(3)
        reads = []
        for ct in range(4):
            base = 56 + 18 * ct
            for k in range(4):
                reads.append(f"ds_read_b64_tr_b16 v[{base+4*k}:{base+4*k+1}], v{8+ct} offset:{4096*k}")
                reads.append(f"ds_read_b64_tr_b16 v[{base+4*k+2}:{base+4*k+3}], v{8+ct} offset:{4096*k+2048}")
            reads.append(f"ds_read_b64_tr_b16 v[{base+16}:{base+17}], v{8+ct} offset:16384")
        pos = 0
        for ct in range(4):
            upto = min(36, 9 * (ct + 1) + 5)
            while pos < upto:
                A(reads[pos]); pos += 1
            base = 56 + 18 * ct
            d = f"v[{36+4*ct}:{39+4*ct}]"
            A(f"s_waitcnt lgkmcnt({5 if ct < 3 else 0})")
            A(f"v_mfma_f32_16x16x16_bf16 {d}, v[32:33], v[{base+16}:{base+17}], 0")
            A("s_nop 5")
            for k in range(4):
                A(f"v_mfma_f32_16x16x32_bf16 {d}, v[{16+4*k}:{19+4*k}], v[{base+4*k}:{base+4*k+3}], {d}")
        qp = self.opt("qst", "sc1")
        if self.opt("noq", 0) < 2: A(f"""
        v_mov_b32 v4, v36
        v_mov_b32 v6, v40
        v_mov_b32 v52, v44
        {'' if self.opt('qhalf', 0) else 'global_store_dwordx4 v13, v[4:7], s[28:29] ' + qp}
        s_nop 4
        v_mov_b32 v54, v48
        global_store_dwordx4 v13, v[52:55], s[28:29] offset:256 {qp}
        """)
        self.stamp(4)
        self.lds_signal(F_QP, 8)
        A("L_A_poll:")
        A(f"""
        s_lshl_b32 s44, s30, 15
        s_lshl_b32 s45, s32, 13
        s_add_u32 s44, s44, s45
        s_lshl_b32 s45, s3, 9
        s_add_u32 s44, s44, s45
        s_add_u32 s44, s44, {W_Q}
        s_add_u32 s48, s28, s44
        s_addc_u32 s49, s29, 0
        v_lshrrev_b32 v20, 5, v0
        v_and_b32 v3, 31, v0
        v_lshlrev_b32 v21, 12, v20
        v_lshl_add_u32 v21, v3, 4, v21
        v_add_u32 v21, s44, v21
        s_lshl_b32 s44, s3, 7
        s_add_u32 s44, s44, {QS}
        v_and_b32 v3, 15, v0
        v_lshlrev_b32 v22, 1, v3
        v_lshl_add_u32 v22, v20, 5, v22
        v_bfe_u32 v23, v0, 4, 1
        v_lshl_add_u32 v22, v23, 6, v22
        v_add_u32 v22, s44, v22
        v_bfe_u32 v24, v0, 3, 1
        v_lshlrev_b32 v24, 8, v24
        v_lshl_add_u32 v24, v2, 4, v24
        v_add_u32 v24, {QS}, v24
        v_and_b32 v25, 3, v0
        v_bfe_u32 v26, v0, 2, 2
        v_lshl_add_u32 v25, v25, 2, v26
        v_lshlrev_b32 v25, 8, v25
        v_xor_b32 v26, v2, v3
        v_lshl_add_u32 v25, v26, 4, v25
        s_lshl_b32 s44, s3, 15
        v_add_u32 v28, s44, v25
        v_xor_b32 v29, 64, v28
        v_xor_b32 v30, 0x80, v28
        v_xor_b32 v31, 0xc0, v28
        """)
        self.lds_wait(F_QP, 1, 8, sleep=2)
        if self.opt("qtk", 0):
            self.lds_wait(F_T, self.opt("qtk", 0), 8, sleep=2)
            A("s_branch L_qpoll")
        A(f"""
        {'s_branch L_qskip' if self.opt('noq', 0) else ''}
        L_qsp:
        s_load_dwordx2 s[52:53], s[48:49], 0x1f8 glc
        s_load_dwordx2 s[54:55], s[48:49], 0x9f8 glc
        s_load_dwordx2 s[56:57], s[48:49], 0x11f8 glc
        s_load_dwordx2 s[58:59], s[48:49], 0x19f8 glc
        """)
        self.guard(16)
        A(f"""
        s_sleep {self.opt('qsleep', 2)}
        s_waitcnt lgkmcnt(0)
        s_xor_b32 s53, s53, s61
        s_xor_b32 s55, s55, s61
        s_xor_b32 s57, s57, s61
        s_xor_b32 s59, s59, s61
        s_or_b32 s53, s53, s55
        s_or_b32 s57, s57, s59
        s_or_b32 s53, s53, s57
        s_cbranch_scc1 L_qsp
        {'s_mov_b32 exec_lo, 0xffff0000' if self.opt('qhalf', 0) else ''}
        {'s_mov_b32 exec_hi, 0xffff0000' if self.opt('qhalf', 0) else ''}
        L_qpoll:
        global_load_dwordx4 v[8:11], v21, s[28:29] sc1
        global_load_dwordx4 v[12:15], v21, s[28:29] offset:2048 sc1
        """)
        self.guard(64)
        A("s_waitcnt vmcnt(0)")
        self.tagchk([8, 12], 16, 17)
        A("""
        s_cbranch_vccnz L_qpoll
        L_qskip:
        s_mov_b64 exec, -1
        v_add_f32 v8, v8, v12
        v_add_f32 v10, v10, v14
        s_nop 1
        v_permlane32_swap_b32 v8, v10
        v_add_f32 v8, v8, v10
        v_cvt_pk_bf16_f32 v8, v8, v8
        ds_write_b16 v22, v8
        """)
        self.lds_signal(F_Q, 6)
        self.stamp(5)
        self.lds_wait(F_Q, 4, 6)
        for t in range(4):
            A(f"ds_read_b128 v[{8+4*t}:{11+4*t}], v24 offset:{64*t}")
        self.lds_wait(F_K, 8, 6, sleep=1)
        self.stamp(6)

        def kread(tau):
            for t in range(4):
                r = 64 + ((tau % 4) * 4 + t) * 4
                A(f"ds_read_b128 v[{r}:{r+3}], v{28+t} offset:{4096*tau}")
        for tau in range(2):
            kread(tau)
        for tau in range(8):
            if tau + 2 < 8:
                kread(tau + 2)
            out = min(2, 7 - tau) * 4
            for t in range(4):
                r = 64 + ((tau % 4) * 4 + t) * 4
                A(f"s_waitcnt lgkmcnt({out + 3 - t})")
                c = "0" if t == 0 else f"v[{32+4*tau}:{35+4*tau}]"
                A(f"v_mfma_f32_16x16x32_bf16 v[{32+4*tau}:{35+4*tau}], v[{r}:{r+3}], v[{8+4*t}:{11+4*t}], {c}")
        A("s_mov_b32 s44, 0x02020202")
        for tau in range(1, 8):
            A(f"""
            s_mov_b32 exec_lo, s44
            s_mov_b32 exec_hi, s44
            v_mov_b32 v32, v{32+4*tau}
            v_mov_b32 v33, v{33+4*tau}
            v_mov_b32 v34, v{34+4*tau}
            v_mov_b32 v35, v{35+4*tau}
            s_lshl_b32 s44, s44, 1
            """)
        A("s_mov_b64 exec, -1\nv_mov_b32 v20, 0x3db504f3")
        for i in (32, 34):
            self.rb2(i, i + 1)
            A(f"v_mul_f32 v{i}, v{i}, v20\nv_mul_f32 v{i+1}, v{i+1}, v20")
            self.rb2(i, i + 1)
        mx = "v_max_f32_dpp v3, v3, v3"
        A(f"""
        v_max_f32 v3, v32, v33
        v_max3_f32 v3, v3, v34, v35
        v_bfe_u32 v5, v0, 3, 1
        v_lshlrev_b32 v5, 4, v5
        {mx} quad_perm:[1,0,3,2] {DPPF}
        v_add_u32 v5, {MA}, v5
        s_lshl_b32 s44, s3, 2
        {mx} quad_perm:[2,3,0,1] {DPPF}
        v_add_u32 v6, s44, v5
        s_nop 0
        {mx} row_half_mirror {DPPF}
        """)
        self.xlane45(3, 4, "max")
        A("ds_write_b32 v6, v3")
        self.lds_signal(F_M, 8)
        A(f"""
        v_bfe_u32 v7, v0, 3, 1
        v_lshlrev_b32 v7, 11, v7
        v_lshl_add_u32 v7, v2, 6, v7
        v_bfe_u32 v8, v0, 2, 1
        v_lshl_add_u32 v7, v8, 8, v7
        v_and_b32 v8, 3, v0
        v_lshl_add_u32 v7, v8, 4, v7
        s_lshl_b32 s44, s3, 9
        s_add_u32 s44, s44, {PB}
        v_add_u32 v14, s44, v7
        """)
        self.lds_wait(F_M, 4, 8)
        sm = "v_add_f32_dpp v12, v12, v12"
        A(f"""
        ds_read_b128 v[8:11], v5
        v_mov_b32 v20, 0x3fb8aa3b
        s_waitcnt lgkmcnt(0)
        v_max_f32 v3, v8, v9
        v_max3_f32 v3, v3, v10, v11
        v_mul_f32 v4, v3, v20
        v_fma_f32 v32, v32, v20, -v4
        v_fma_f32 v33, v33, v20, -v4
        v_fma_f32 v34, v34, v20, -v4
        v_fma_f32 v35, v35, v20, -v4
        v_exp_f32 v32, v32
        v_exp_f32 v33, v33
        v_exp_f32 v34, v34
        v_exp_f32 v35, v35
        v_add_f32 v12, v32, v33
        v_cvt_pk_bf16_f32 v36, v32, v32
        v_add_f32 v13, v34, v35
        v_cvt_pk_bf16_f32 v37, v33, v33
        v_add_f32 v12, v12, v13
        v_cvt_pk_bf16_f32 v38, v34, v34
        v_cvt_pk_bf16_f32 v39, v35, v35
        {sm} quad_perm:[1,0,3,2] {DPPF}
        ds_write_b128 v14, v[36:39]
        s_nop 0
        {sm} quad_perm:[2,3,0,1] {DPPF}
        s_nop 1
        {sm} row_half_mirror {DPPF}
        """)
        self.xlane45(12, 13, "add")
        A(f"ds_write_b32 v6, v12 offset:{LA-MA}")
        self.lds_signal(F_P, 6, rtn=True)
        A(f"""
        s_getreg_b32 s63, hwreg(HW_REG_XCC_ID, 0, 4)
        s_waitcnt lgkmcnt(0)
        v_readfirstlane_b32 s46, v7
        s_nop 0
        s_cmp_lg_u32 s46, 3
        s_cbranch_scc1 L_A_noml
        ds_read_b128 v[12:15], v5 offset:{LA-MA}
        s_xor_b32 s45, s61, s63
        v_mov_b32 v8, v3
        v_mov_b32 v9, s60
        v_mov_b32 v11, s45
        s_lshl_b32 s44, s35, 7
        s_lshl_b32 s45, s33, 4
        s_add_u32 s44, s44, s45
        s_add_u32 s44, s44, {W_ML}
        v_bfe_u32 v5, v0, 3, 1
        v_lshlrev_b32 v5, 6, v5
        v_add_u32 v5, s44, v5
        s_mov_b64 exec, 0x101
        s_waitcnt lgkmcnt(0)
        v_add_f32 v12, v12, v13
        v_add_f32 v14, v14, v15
        v_add_f32 v10, v12, v14
        global_store_dwordx4 v5, v[8:11], s[28:29] sc1
        s_mov_b64 exec, -1
        L_A_noml:
        """)
        self.stamp(9)
        A(f"""
        s_lshl_b32 s44, s30, 8
        s_lshl_b32 s45, s3, 6
        s_add_u32 s44, s44, s45
        s_mul_i32 s44, s44, 1152
        s_add_u32 s40, s12, s44
        s_addc_u32 s41, s13, 0
        s_mov_b32 s42, {64*1152}
        v_lshrrev_b32 v20, 3, v0
        v_bfe_u32 v3, v0, 4, 2
        v_lshlrev_b32 v3, 1, v3
        v_and_b32 v4, 7, v0
        v_xor_b32 v3, v3, v4
        v_lshlrev_b32 v3, 4, v3
        v_mul_u32_u24 v20, 1152, v20
        v_add_u32 v20, v20, v3
        v_add_u32 v20, 0x400, v20
        v_and_b32 v3, 15, v0
        v_lshlrev_b32 v3, 4, v3
        v_lshlrev_b32 v4, 5, v2
        v_xor_b32 v3, v3, v4
        v_xor_b32 v4, 0x80, v3
        v_mul_u32_u24 v21, 1152, v2
        s_lshl_b32 s45, s33, 8
        v_add3_u32 v22, v21, v4, s45
        v_add3_u32 v21, v21, v3, s45
        v_add_u32 v22, {4*1152}, v22
        s_mov_b32 s56, s3
        s_cmp_eq_u32 s33, s32
        s_cselect_b32 s57, 1, 0
        """)
        self.lds_wait(F_P, 4, 6)
        self.stamp(10)
        wp = self.opt("wo", "")
        A(f"""
        s_lshl_b32 m0, s3, 14
        s_mov_b32 s44, 0
        L_woloop:
        buffer_load_dwordx4 v21, s[40:43], s44 offen {wp} lds
        s_add_u32 m0, m0, 0x400
        s_nop 0
        buffer_load_dwordx4 v22, s[40:43], s44 offen {wp} lds
        s_add_u32 m0, m0, 0x400
        s_add_u32 s44, s44, {8*1152}
        s_cmp_lt_u32 s44, {64*1152}
        s_cbranch_scc1 L_woloop
        s_cmp_eq_u32 s57, 0
        s_cbranch_scc1 L_wo8done
        s_lshl_b32 s44, s3, 13
        s_add_u32 m0, s44, {WO8}
        s_mov_b32 s44, 0
        L_wo8:
        buffer_load_dwordx4 v20, s[40:43], s44 offen {wp} lds
        s_add_u32 m0, m0, 0x400
        s_add_u32 s44, s44, {8*1152}
        s_cmp_lt_u32 s44, {64*1152}
        s_cbranch_scc1 L_wo8
        L_wo8done:
        s_cmp_lg_u32 s3, 0
        s_cbranch_scc1 L_A_wowait
        """)
        if self.opt("noml", 0): A("s_branch L_A_wowait")
        A(f"""
        s_lshl_b32 s44, s35, 12
        s_lshl_b32 s45, s33, 10
        s_add_u32 s44, s44, s45
        s_add_u32 s44, s44, {W_O}
        v_add_u32 v3, s44, v1
        global_load_dwordx4 v[24:27], v3, s[28:29] sc1
        s_lshl_b32 s45, s35, 7
        s_add_u32 s45, s45, {W_ML}
        s_add_u32 s48, s28, s45
        s_addc_u32 s49, s29, 0
        v_subrev_u32 v15, s33, v2
        v_and_b32 v15, 3, v15
        v_lshlrev_b32 v15, 2, v15
        v_add_u32 v15, {FB}, v15
        s_mov_b32 s58, 0
        L_mlpoll:
        s_load_dwordx16 s[4:19], s[48:49], 0 glc
        """)
        self.guard(16)
        A("s_sleep 2\ns_waitcnt lgkmcnt(0)\ns_mov_b32 s44, 0\ns_mov_b32 s47, 0")
        for i in range(4):
            A(f"""
            s_xor_b32 s45, s{4+4*i+1}, s60
            s_or_b32 s44, s44, s45
            s_xor_b32 s45, s{4+4*i+3}, s61
            s_xor_b32 s46, s45, s63
            s_or_b32 s47, s47, s46
            s_lshr_b32 s45, s45, 4
            s_or_b32 s44, s44, s45
            """)
        A(f"""
        s_cbranch_scc1 L_mlpoll
        v_mov_b32 v8, s4
        v_mov_b32 v10, s6
        v_mov_b32 v9, s8
        v_mov_b32 v11, s10
        v_cmp_eq_u32 vcc, 1, v2
        v_mov_b32 v12, s12
        v_mov_b32 v13, s14
        v_cndmask_b32 v8, v8, v9, vcc
        v_cndmask_b32 v10, v10, v11, vcc
        v_cmp_eq_u32 vcc, 2, v2
        v_mov_b32 v9, s16
        v_mov_b32 v11, s18
        v_cndmask_b32 v8, v8, v12, vcc
        v_cndmask_b32 v10, v10, v13, vcc
        v_cmp_eq_u32 vcc, 3, v2
        s_nop 1
        v_cndmask_b32 v8, v8, v9, vcc
        v_cndmask_b32 v10, v10, v11, vcc
        v_mov_b32 v12, v8
        """)
        self.xlane45(12, 13, "max")
        A("""
        v_sub_f32 v12, v8, v12
        v_mul_f32 v12, 0x3fb8aa3b, v12
        v_exp_f32 v12, v12
        s_nop 0
        v_mul_f32 v13, v12, v10
        """)
        self.xlane45(13, 14, "add")
        A(f"""
        v_rcp_f32 v13, v13
        s_add_u32 s48, s48, 64
        s_addc_u32 s49, s49, 0
        v_mul_f32 v12, v12, v13
        ds_write_b32 v15, v12
        v_add_u32 v15, 16, v15
        s_add_u32 s58, s58, 1
        s_cmp_lt_u32 s58, 2
        s_cbranch_scc1 L_mlpoll
        s_cmp_eq_u32 s47, 0
        s_cselect_b32 s44, 2, 1
        v_mov_b32 v8, {F_F}
        v_mov_b32 v9, s44
        ds_write_b32 v8, v9
        """)
        self.stamp(11)
        A("L_A_wowait:\ns_waitcnt vmcnt(0)")
        self.lds_signal(F_WO, 6)
        A("s_branch L_proj")

    def gen_M(self):
        A = self.A
        A(f"""
        L_M2:
        s_mul_i32 s58, s96, 1821
        s_lshr_b32 s58, s58, 16
        s_mul_i32 s59, s58, 36
        s_sub_u32 s59, s96, s59
        s_lshl_b32 s44, s34, 6
        v_add_u32 v13, s44, v0
        v_lshlrev_b32 v14, 2, v13
        v_lshlrev_b32 v13, 4, v13
        v_add_u32 v15, 0x1000, v13
        v_add_u32 v14, 0x2000, v14
        v_and_b32 v92, 7, v0
        v_lshrrev_b32 v3, 5, v0
        v_lshl_add_u32 v92, v92, 1, v3
        s_mul_i32 s44, s58, 1152
        s_lshl_b32 s45, s59, 5
        s_add_u32 s44, s44, s45
        v_lshlrev_b32 v93, 1, v92
        v_add_u32 v93, s44, v93
        v_mov_b32 v95, 0
        """)
        self.lds_wait(F_X, 4, 4, sleep=1)
        for (p, r) in (("s[16:17]", 96), ("s[18:19]", 106), ("s[20:21]", 116)):
            A(f"""
            global_load_dwordx4 v[{r}:{r+3}], v13, {p}
            global_load_dwordx4 v[{r+4}:{r+7}], v15, {p}
            global_load_dword v{r+8}, v14, {p}
            """)
        A("global_load_ushort v94, v93, s[4:5]\nglobal_load_ushort v95, v95, s[22:23]")
        self.read_tag(4)
        A(f"""
        s_mul_i32 s44, s58, 1152
        s_add_u32 s44, s44, {XN}
        v_lshlrev_b32 v14, 1, v0
        v_add_u32 v11, s44, v1
        v_add_u32 v12, s44, v14
        ds_read_b128 v[16:19], v11
        ds_read_u16 v20, v12 offset:1024
        s_waitcnt lgkmcnt(0)
        """)
        self.unpack9(16, 20)
        A("s_call_b64 s[50:51], L_ln")
        A(f"""
        v_lshlrev_b32 v11, 5, v0
        v_add_u32 v11, {HB}, v11
        v_lshlrev_b32 v12, 2, v0
        v_add_u32 v12, {HB}, v12
        ds_write_b128 v11, v[22:25]
        ds_write_b128 v11, v[26:29] offset:16
        ds_write_b32 v12, v30 offset:2048
        s_lshl_b32 s44, s59, 6
        s_add_u32 s44, s44, {HB}
        v_mov_b32 v15, s44
        s_waitcnt vmcnt(0)
        """)
        self.stamp(1)
        for (r, dst) in ((96, 32), (106, 50), (116, 68)):
            for i in range(9):
                A(f"v_lshlrev_b32 v{dst+2*i}, 16, v{r+i}\nv_and_b32 v{dst+2*i+1}, 0xffff0000, v{r+i}")
        K0 = -2.0 * math.sqrt(2.0 / math.pi) * math.log2(math.e)
        K1 = K0 * 0.044715
        A(f"""
        v_mov_b32 v30, {f2u(K0):#x}
        v_mov_b32 v31, {f2u(K1):#x}
        s_lshl_b32 s44, s34, 4
        s_add_u32 s44, s44, {GP}
        v_lshlrev_b32 v14, 2, v2
        v_add_u32 v14, s44, v14
        s_mov_b32 s47, 0
        s_mov_b32 s48, 0x00010001
        s_mov_b32 s49, 0x00010001
        s_waitcnt lgkmcnt(0)
        ds_read_b32 v4, v15
        L_mlp:
        v_mov_b32 v6, 0
        v_mov_b32 v7, 0
        s_waitcnt lgkmcnt(0)
        """)
        for grp in range(3):
            ks = [3 * grp + j for j in range(3)]
            U = lambda j: f"v[{8+2*j}:{9+2*j}]"
            T = lambda j: f"v[{16+2*j}:{17+2*j}]"
            P = lambda base, k: f"v[{base+2*k}:{base+2*k+1}]"
            for j, k in enumerate(ks): A(f"v_pk_fma_f32 {U(j)}, {P(32,k)}, v[4:5], {P(50,k)} op_sel_hi:[1,0,1]")
            for j, k in enumerate(ks): A(f"v_pk_mul_f32 {T(j)}, {U(j)}, {U(j)}")
            for j, k in enumerate(ks): A(f"v_pk_fma_f32 {T(j)}, {T(j)}, v[30:31], v[30:31] op_sel:[0,1,0] op_sel_hi:[1,1,0]")
            for j, k in enumerate(ks): A(f"v_pk_mul_f32 {T(j)}, {T(j)}, {U(j)}")
            for j, k in enumerate(ks): A(f"v_exp_f32 v{16+2*j}, v{16+2*j}\nv_exp_f32 v{17+2*j}, v{17+2*j}")
            for j, k in enumerate(ks): A(f"v_pk_mul_f32 {U(j)}, {U(j)}, {P(68,k)}")
            for j, k in enumerate(ks): A(f"v_pk_add_f32 {T(j)}, {T(j)}, 1.0 op_sel_hi:[1,0]")
            for j, k in enumerate(ks): A(f"v_rcp_f32 v{16+2*j}, v{16+2*j}\nv_rcp_f32 v{17+2*j}, v{17+2*j}")
            A("v_add_u32 v15, 4, v15\nds_read_b32 v4, v15" if grp == 2 else "s_nop 0")
            for j, k in enumerate(ks): A(f"v_pk_fma_f32 v[6:7], {U(j)}, {T(j)}, v[6:7]")
        ins = "v_add_f32_dpp v6, v6, v6"
        A(f"""
        v_add_f32 v6, v6, v7
        s_nop 1
        {ins} quad_perm:[1,0,3,2] {DPPF}
        s_nop 1
        {ins} quad_perm:[2,3,0,1] {DPPF}
        s_nop 1
        {ins} row_half_mirror {DPPF}
        s_nop 1
        {ins} row_mirror {DPPF}
        s_mov_b64 exec, s[48:49]
        ds_write_b32 v14, v6
        s_mov_b64 exec, -1
        v_add_u32 v14, 64, v14
        s_add_u32 s47, s47, 1
        s_cmp_lt_u32 s47, 16
        s_cbranch_scc1 L_mlp
        s_waitcnt lgkmcnt(0)
        """)
        self.lds_signal(F_G, 8)
        self.stamp(2)
        A(f"""
        s_cmp_lg_u32 s34, 0
        s_cbranch_scc1 L_end
        s_setprio 3
        v_lshlrev_b32 v6, 6, v92
        v_add_u32 v6, {GP}, v6
        s_lshl_b32 s44, s96, 11
        s_add_u32 s44, s44, {W_S}
        v_add_u32 v7, s44, v1
        global_load_dwordx4 v[32:35], v7, s[28:29] sc1
        global_load_dwordx4 v[36:39], v7, s[28:29] offset:1024 sc1
        """)
        self.lds_wait(F_G, 4, 8, sleep=1)
        A("""
        ds_read_b128 v[8:11], v6
        ds_read_b128 v[12:15], v6 offset:16
        ds_read_b128 v[16:19], v6 offset:32
        ds_read_b128 v[20:23], v6 offset:48
        s_waitcnt lgkmcnt(0)
        """)
        for i in range(9, 24):
            A(f"v_add_f32 v8, v8, v{i}")
        self.rb(8)
        A("v_lshlrev_b32 v4, 16, v94\nv_lshlrev_b32 v5, 16, v95\nv_add_f32 v8, v8, v5")
        self.rb(8)
        A("""
        v_mul_f32 v9, 0xbfb8aa3b, v8
        v_exp_f32 v9, v9
        s_nop 0
        v_add_f32 v9, 1.0, v9
        v_rcp_f32 v9, v9
        s_nop 0
        v_mul_f32 v5, v8, v9
        """)
        self.rb(5)
        A(f"""
        v_bfe_u32 v8, v0, 3, 2
        v_cmp_eq_u32 s[52:53], 0, v8
        s_waitcnt vmcnt(0)
        """)
        self.stamp(3)
        if self.opt("notail", 0) or self.opt("cut", 0):
            A("s_branch L_end")
        self.lds_wait(F_OB, 1, 8, sleep=1)
        self.stamp(4)
        if self.opt("mask2", 1):
            self.poll2m(7, 1024, 32, 16, "L_spoll", sleep=self.opt("ssleep", 0), pol=self.opt("spol", "sc1").replace("_", " "))
            A("v_add_f32 v10, v32, v36\nv_add_f32 v11, v34, v38")
        else:
            self.poll2(7, 1024, 32, 40, 16, "L_spoll",
                   lambda b: A(f"v_add_f32 v10, v{b}, v{b+4}\nv_add_f32 v11, v{b+2}, v{b+6}"))
        A(f"""
        s_nop 1
        v_permlane32_swap_b32 v10, v11
        v_add_f32 v10, v10, v11
        v_mov_b32 v11, v10
        s_nop 1
        v_permlane16_swap_b32 v10, v11
        v_add_f32 v10, v10, v11
        s_nop 1
        v_add_f32_dpp v10, v10, v10 row_ror:8 {DPPF}
        """)
        self.rb(10)
        A("v_mul_f32 v10, v10, v5")
        self.rb(10)
        A(f"""
        v_add_f32 v10, v10, v4
        v_cvt_pk_bf16_f32 v10, v10, v10
        s_mov_b64 exec, s[52:53]
        global_store_short v93, v10, s[24:25] {self.opt('opol', '').replace('_', ' ')}
        s_mov_b64 exec, -1
        """)
        self.stamp(5)
        A(f"""
        s_cmp_lg_u32 s96, 0
        s_cbranch_scc1 L_end
        v_mov_b32 v8, 0
        v_mov_b32 v10, s60
        v_mov_b32 v11, s61
        s_mov_b64 exec, 1
        global_store_dwordx2 v8, v[10:11], s[28:29] offset:{W_EPOCH}
        s_mov_b64 exec, -1
        """)


if __name__ == "__main__":
    import argparse
    ap = argparse.ArgumentParser()
    ap.add_argument("--out", default="recurrent_scan__sliding_block_cached__mixer_token_mlp__decode.s")
    ap.add_argument("--stamps", action="store_true")
    ap.add_argument("--opt", action="append", default=[])
    a = ap.parse_args()
    opts = dict(x.split("=", 1) for x in a.opt)
    open(a.out, "w").write(G(a.stamps, opts).gen())
```

```python
import sys, math, struct
NAME = "recurrent_scan__sliding_block_cached__mixer_token_mlp__decode_kernel"

KBUF = 0
WQ   = 131072
PB   = WQ
OPART = WQ + 4096
XN   = WQ + 18432
HB   = XN + 4608
QS   = HB + 2304
GP   = QS + 512
INIT = GP + 1024
(F_X, F_Q, F_K, F_M, F_P, F_WO, F_O, F_OB, F_G, F_T, F_WQ, F_QP, F_F, F_S, F_VI) = [INIT + 4 * i for i in range(15)]
TAG  = INIT + 64
FB   = INIT + 128
MA   = INIT + 96
LA   = INIT + 192
OB   = INIT + 512
LDS_BYTES = INIT + 1024
assert LDS_BYTES <= 163840, LDS_BYTES
WO8 = 65536
W_EPOCH = 0
W_Q  = 0x1000
W_ML = 0x90000
W_O  = 0xA0000
W_S  = 0x140000
W_G  = 0x94000
STAMP_OFF = 0x10000000
LIMIT = 0x400000
f2u = lambda f: struct.unpack("<I", struct.pack("<f", f))[0]
DPPF = "row_mask:0xf bank_mask:0xf"


DOC = '''
; ---------------------------------------------------------------------------------------------
; owns keys [512s, 512s+512) of the 2048-key window of (b, kvh) for both query heads of that kv head.
; Hand-offs between workgroups go through d_ws as 16-byte granules {data, tagL, data, tagH}; the 64-bit tag
; is (epoch word found in d_ws on entry) + constant, and the new epoch is stored at the end of the launch.
; ---------------------------------------------------------------------------------------------
'''


class G:
    def __init__(self, stamps=False, opts=None):
        self.L = []
        self.stamps = stamps
        self.o = opts or {}
        self.uid = 0

    def opt(self, k, d):
        v = self.o.get(k, d)
        return type(d)(v) if not isinstance(d, str) else v

    def A(self, s):
        for line in s.strip("\n").split("\n"):
            t = line.strip()
            if not t:
                continue
            self.L.append(t if t.endswith(":") else "  " + t)

    def lab(self, p="L"):
        self.uid += 1
        return f"{p}_{self.uid}"

    def stamp(self, i):
        if self.stamps:
            self.A(f"s_memrealtime s[{64+2*i}:{65+2*i}]\ns_waitcnt lgkmcnt(0)")

    def guard(self, inc):
        self.A(f"s_add_u32 s62, s62, {inc}\ns_cmp_gt_u32 s62, {LIMIT:#x}\ns_cbranch_scc1 L_end")

    def lds_wait(self, addr, val, vt, sleep=0):
        l = self.lab("LW")
        self.A(f"v_mov_b32 v{vt}, {addr}\n{l}:\nds_read_b32 v{vt+1}, v{vt}")
        self.guard(1)
        if sleep:
            self.A(f"s_sleep {sleep}")
        self.A(f"""
        s_waitcnt lgkmcnt(0)
        v_readfirstlane_b32 s46, v{vt+1}
        s_nop 0
        s_cmp_lt_u32 s46, {val}
        s_cbranch_scc1 {l}
        """)

    def lds_signal(self, addr, vt, rtn=False):
        self.A(f"v_mov_b32 v{vt}, {addr}\nv_mov_b32 v{vt+1}, 1\ns_mov_b64 exec, 1")
        self.A(f"ds_add_rtn_u32 v{vt+1}, v{vt}, v{vt+1}" if rtn else f"ds_add_u32 v{vt}, v{vt+1}")
        self.A("s_mov_b64 exec, -1")

    def wave_sum(self, v, s):
        ins = f"v_add_f32_dpp v{v}, v{v}, v{v}"
        self.A(f"""
        s_nop 1
        {ins} quad_perm:[1,0,3,2] {DPPF}
        s_nop 1
        {ins} quad_perm:[2,3,0,1] {DPPF}
        s_nop 1
        {ins} row_half_mirror {DPPF}
        s_nop 1
        {ins} row_mirror {DPPF}
        s_nop 1
        {ins} row_bcast:15 row_mask:0xa bank_mask:0xf
        s_nop 1
        {ins} row_bcast:31 row_mask:0xc bank_mask:0xf
        s_nop 0
        v_readlane_b32 s{s}, v{v}, 63
        s_nop 1
        """)

    def rb(self, v):
        self.A(f"v_cvt_pk_bf16_f32 v{v}, v{v}, v{v}\nv_and_b32 v{v}, 0xffff0000, v{v}")

    def rb2(self, a, b):
        self.A(f"v_cvt_pk_bf16_f32 v{b}, v{a}, v{b}\nv_lshlrev_b32 v{a}, 16, v{b}\nv_and_b32 v{b}, 0xffff0000, v{b}")

    def read_tag(self, vt):
        self.A(f"""
        v_mov_b32 v{vt}, {TAG}
        ds_read_b64 v[{vt}:{vt+1}], v{vt}
        s_waitcnt lgkmcnt(0)
        v_readfirstlane_b32 s60, v{vt}
        v_readfirstlane_b32 s61, v{vt+1}
        s_nop 1
        """)

    def xlane45(self, v, t, op):
        self.A(f"""
        v_mov_b32 v{t}, v{v}
        s_nop 1
        v_permlane32_swap_b32 v{v}, v{t}
        v_{op}_f32 v{v}, v{v}, v{t}
        v_mov_b32 v{t}, v{v}
        s_nop 1
        v_permlane16_swap_b32 v{v}, v{t}
        v_{op}_f32 v{v}, v{v}, v{t}
        """)

    def tagchk(self, sets, acc, t):
        first = True
        for b in sets:
            if first:
                self.A(f"v_xor_b32 v{acc}, s60, v{b+1}\nv_xor_b32 v{t}, s61, v{b+3}\nv_or_b32 v{acc}, v{acc}, v{t}")
                first = False
            else:
                self.A(f"v_xor_b32 v{t}, s60, v{b+1}\nv_xor_b32 v{t+1}, s61, v{b+3}\nv_or3_b32 v{acc}, v{acc}, v{t}, v{t+1}")
        self.A(f"v_cmp_ne_u32 vcc, 0, v{acc}")

    def poll2(self, vaddr, off2, A0, B0, acc, name, consume, pre=None):
        A = self.A
        ld = lambda r: (f"global_load_dwordx4 v[{r}:{r+3}], v{vaddr}, s[28:29] sc1\n"
                        f"global_load_dwordx4 v[{r+4}:{r+7}], v{vaddr}, s[28:29] offset:{off2} sc1")
        A(ld(A0))
        if pre: pre()
        A(f"{name}:\n" + ld(B0))
        self.guard(64)
        A("s_waitcnt vmcnt(2)")
        self.tagchk([A0, A0 + 4], acc, acc + 1)
        A(f"s_cbranch_vccz {name}_a\n" + ld(A0) + "\ns_waitcnt vmcnt(2)")
        self.tagchk([B0, B0 + 4], acc, acc + 1)
        A(f"s_cbranch_vccnz {name}")
        consume(B0)
        A(f"s_branch {name}_ok\n{name}_a:")
        consume(A0)
        A(f"{name}_ok:")

    def poll2m(self, vaddr, off2, A0, acc, name, pre=None, sleep=0, pol="sc1"):
        A = self.A
        ld = (f"global_load_dwordx4 v[{A0}:{A0+3}], v{vaddr}, s[28:29] {pol}\n"
              f"global_load_dwordx4 v[{A0+4}:{A0+7}], v{vaddr}, s[28:29] offset:{off2} {pol}")
        A(ld)
        if pre: pre()
        A(f"{name}:")
        if sleep: A(f"s_sleep {sleep}")
        A(ld)
        self.guard(64)
        A("s_waitcnt vmcnt(2)")
        self.tagchk([A0, A0 + 4], acc, acc + 1)
        A(f"s_mov_b64 exec, vcc\ns_cbranch_vccnz {name}\ns_mov_b64 exec, -1")

    def frag_reads(self):
        A = self.A
        for d in range(3):
            A(f"v_mov_b32 v4, v{51+d}")
            for k in range(2):
                r = 96 + (d * 2 + k) * 4
                A(f"""
                ds_read_b64_tr_b16 v[{r}:{r+1}], v4
                v_add_u32 v4, s{57+d}, v4
                ds_read_b64_tr_b16 v[{r+2}:{r+3}], v4
                """)
                if k == 0:
                    A(f"v_add_u32 v4, s{57+d}, v4")
        A(f"""
        v_mov_b32 v61, s60
        v_mov_b32 v63, s61
        v_mov_b32 v4, {F_OB}
        v_cndmask_b32 v61, v61, v63, s[54:55]
        """)

    def gen(self):
        A = self.A
        for line in open("recurrent_scan__sliding_block_cached__mixer_token_mlp__decode.s.ref").read().split("\n"):
            if line.startswith("; @launch"):
                self.L.append(f"; @launch grid=(256,1,1) block=(1024,1,1) lds={LDS_BYTES}")
                break
            self.L.append(line)
        self.L += DOC.strip("\n").split("\n")
        self.L += ['.amdgcn_target "amdgcn-amd-amdhsa--gfx950"', ".text", f".globl {NAME}", ".p2align 8",
                   f".type {NAME},@function", f"{NAME}:"]
        if self.stamps:
            A("s_memrealtime s[64:65]")
            for i in range(66, 96):
                A(f"s_mov_b32 s{i}, 0")
        cons = [1, 2, 4, 6, 8, 9, 12, 13, 14] if self.opt("cmap", 2) == 2 else [1, 2, 3, 4, 6, 7, 8, 9, 11]
        LUT = 0
        for u in range(16):
            nib = cons.index(u) if u in cons else (15 if u % 5 == 0 else 14)
            LUT |= nib << (4 * u)
        A(f"""
        s_cmp_ge_u32 s2, 256
        s_cbranch_scc1 L_exit
        s_load_dwordx16 s[4:19], s[0:1], 0
        s_load_dwordx8 s[20:27], s[0:1], 64
        s_load_dwordx2 s[28:29], s[0:1], 96
        v_lshrrev_b32 v1, 6, v0
        v_and_b32 v0, 63, v0
        v_readfirstlane_b32 s3, v1
        s_and_b32 s30, s2, 15
        s_lshr_b32 s31, s2, 4
        {'s_xor_b32 s3, s3, 8' if self.opt('sfirst', 0) else ''}
        s_lshr_b32 s32, s31, 2
        s_and_b32 s33, s31, 3
        s_lshl_b32 s35, s32, 4
        s_add_u32 s35, s35, s30
        s_mov_b32 s96, {LUT & 0xffffffff:#x}
        s_mov_b32 s97, {LUT >> 32:#x}
        s_lshl_b32 s44, s31, 2
        s_lshr_b64 s[96:97], s[96:97], s44
        s_and_b32 s96, s96, 15
        s_lshl_b32 s96, s96, 4
        s_add_u32 s96, s96, s30
        s_mov_b32 s62, 0
        s_mov_b32 s39, 0x20000
        s_mov_b32 s43, 0x20000
        v_lshlrev_b32 v1, 4, v0
        v_lshrrev_b32 v2, 4, v0
        s_cmp_lt_u32 s3, 8
        s_cbranch_scc0 L_S
        s_cmp_lt_u32 s3, 4
        s_cbranch_scc0 L_M
        """)
        A(f"""
        s_setprio {self.opt('prioA', 3)}
        s_mul_i32 s44, s3, 1152
        s_movk_i32 s38, 1152
        v_lshlrev_b32 v14, 1, v0
        s_cmp_lg_u32 s3, 0
        s_cbranch_scc1 L_noinit
        v_mov_b32 v4, 0
        v_mov_b32 v5, 0
        v_mov_b32 v6, 0
        v_mov_b32 v7, 0
        v_add_u32 v3, {INIT}, v1
        ds_write_b128 v3, v[4:7]
        L_noinit:
        s_waitcnt lgkmcnt(0)
        s_add_u32 s36, s4, s44
        s_addc_u32 s37, s5, 0
        buffer_load_dwordx4 v[16:19], v1, s[36:39], 0 offen
        buffer_load_ushort v20, v14, s[36:39], 0 offen offset:1024
        s_load_dwordx2 s[60:61], s[28:29], {W_EPOCH}
        s_barrier
        s_branch L_A
        """)
        A(f"""
        L_M:
        s_setprio {self.opt('prioM', 2)}
        s_sub_u32 s34, s3, 4
        s_lshr_b32 s46, s2, 3
        s_waitcnt lgkmcnt(0)
        s_cmp_lg_u32 s34, 3
        s_cbranch_scc1 L_nowarmc
        s_cmp_lt_u32 s46, (L_code_end-{NAME})>>10
        s_cbranch_scc0 L_nowarmc
        s_getpc_b64 s[44:45]
        L_pc:
        s_sub_u32 s44, s44, L_pc-{NAME}
        s_subb_u32 s45, s45, 0
        s_lshl_b32 s46, s46, 10
        v_add_u32 v3, s46, v1
        global_load_dwordx4 v[88:91], v3, s[44:45]
        L_nowarmc:
        s_cmp_lg_u32 s34, 2
        s_cbranch_scc1 L_nowarmw
        s_cmp_lt_u32 s46, 27
        s_cbranch_scc0 L_nowarmw
        s_mov_b64 s[44:45], s[16:17]
        s_cmp_lt_u32 s46, 9
        s_cbranch_scc1 L_warmw
        s_mov_b64 s[44:45], s[18:19]
        s_sub_u32 s46, s46, 9
        s_cmp_lt_u32 s46, 9
        s_cbranch_scc1 L_warmw
        s_mov_b64 s[44:45], s[20:21]
        s_sub_u32 s46, s46, 9
        L_warmw:
        s_lshl_b32 s46, s46, 10
        v_add_u32 v3, s46, v1
        global_load_dwordx4 v[88:91], v3, s[44:45]
        L_nowarmw:
        s_barrier
        s_cmp_lt_u32 s96, {0 if self.opt('nom', 0) else 144}
        s_cbranch_scc0 L_end
        s_branch L_M2
        """)
        A("L_S:")
        self.gen_S()
        self.gen_proj()
        self.gen_A()
        self.gen_LN()
        self.gen_M()
        A("L_end:")
        if self.stamps:
            A(f"""
            s_mov_b64 exec, -1
            s_waitcnt lgkmcnt(0)
            s_memrealtime s[94:95]
            s_lshl_b32 s44, s2, 4
            s_add_u32 s44, s44, s3
            s_lshl_b32 s44, s44, 7
            s_add_u32 s44, s44, {STAMP_OFF}
            s_add_u32 s28, s28, s44
            s_addc_u32 s29, s29, 0
            s_waitcnt vmcnt(0) lgkmcnt(0)
            """)
            for i in range(32):
                A(f"v_writelane_b32 v6, s{64+i}, {i}")
            A("""
            v_lshlrev_b32 v4, 2, v0
            s_mov_b32 exec_hi, 0
            global_store_dword v4, v6, s[28:29]
            """)
        A("L_exit:")
        A("s_endpgm")
        A("L_code_end:")
        self.L += ['.section .rodata,"a"', ".p2align 6", f".amdhsa_kernel {NAME}",
                   "  .amdhsa_next_free_vgpr 128", "  .amdhsa_next_free_sgpr 100", "  .amdhsa_accum_offset 128",
                   "  .amdhsa_group_segment_fixed_size 0", "  .amdhsa_kernarg_size 104", "  .amdhsa_user_sgpr_count 2",
                   "  .amdhsa_user_sgpr_kernarg_segment_ptr 1", "  .amdhsa_system_sgpr_workgroup_id_x 1",
                   ".end_amdhsa_kernel"]
        kp = self.opt("kvpol", "nt")
        if kp != "nt":
            self.L = [l.replace("offen nt", "offen " + kp.replace("_", " ").replace("def", "")) for l in self.L]
        return "\n".join(self.L) + "\n"

    def gen_S(self):
        A = self.A
        D = self.opt("depth", 4)
        IL = self.opt("ilv", 0)
        A(f"""
        s_setprio {self.opt('prioS', 1)}
        s_sub_u32 s34, s3, 8
        s_mul_i32 s44, s32, {144*8192}
        s_lshl_b32 s45, s30, 9
        s_add_u32 s44, s44, s45
        s_lshl_b32 s45, s33, 7
        s_add_u32 s44, s44, s45
        s_mov_b32 s42, {143*8192+128}
        v_lshrrev_b32 v4, 3, v0
        v_bfe_u32 v3, v0, 4, 2
        v_lshlrev_b32 v3, 1, v3
        v_and_b32 v5, 7, v0
        v_xor_b32 v3, v3, v5
        v_lshlrev_b32 v3, 4, v3
        v_lshl_add_u32 v4, v4, 13, v3
        s_lshl_b32 s45, s34, 10
        s_add_u32 m0, s45, {WQ}
        s_lshl_b32 s45, s34, 16
        s_lshl_b32 s46, s35, 21
        s_lshl_b32 s47, s33, {14 if IL else 17}
        s_add_u32 s46, s46, s47
        s_add_u32 s46, s46, {6144*256}
        s_mov_b32 s38, {0x74000 if IL else 0x20000}
        s_lshl_b32 s47, s34, {16 if IL else 14}
        s_add_u32 s47, s47, s46
        s_mul_i32 s51, s2, 5
        s_add_u32 s51, s51, s31
        v_lshlrev_b32 v3, 6, v2
        v_xor_b32 v3, v1, v3
        v_mov_b32 v5, {F_T}
        v_mov_b32 v6, 1
        s_mov_b32 s50, s34
        s_waitcnt lgkmcnt(0)
        s_add_u32 s40, s10, s44
        s_addc_u32 s41, s11, 0
        s_add_u32 s36, s6, s46
        s_addc_u32 s37, s7, 0
        L_wqloop:
        buffer_load_dwordx4 v4, s[40:43], s45 offen nt lds
        s_add_u32 m0, m0, 0x2000
        s_add_u32 s45, s45, 0x80000
        s_cmp_lt_u32 s45, {18*65536}
        s_cbranch_scc1 L_wqloop
        s_add_u32 s40, s8, s47
        s_addc_u32 s41, s9, 0
        s_movk_i32 s42, 0x4000
        """)
        self.stamp(1)
        A(f"""
        L_kloop:
        s_and_b32 s44, s50, 7
        s_lshr_b32 s45, s50, 3
        s_mul_i32 s46, s44, 3
        s_add_u32 s46, s46, s51
        s_add_u32 s46, s46, s45
        s_and_b32 s46, s46, 15
        {'s_lshl_b32 s48, s44, 6' if IL else ''}
        s_lshl_b32 s44, s44, 4
        s_add_u32 s46, s46, {'s48' if IL else 's44'}
        s_lshl_b32 s46, s46, 10
        s_add_u32 s44, s44, s45
        s_lshl_b32 m0, s44, 10
        s_and_b32 s47, s45, 3
        s_lshl_b32 s47, s47, 4
        v_xor_b32 v4, s47, v3
        s_waitcnt vmcnt({D-1})
        buffer_load_dwordx4 v4, s[36:39], s46 offen nt lds
        s_cmp_lt_u32 s50, 8
        s_cbranch_scc0 L_knobar
        s_barrier
        L_knobar:
        s_cmp_lt_u32 s50, {8*(D-2)}
        s_cbranch_scc0 L_kdyn
        s_add_u32 s50, s50, 8
        s_branch L_kloop
        L_kdyn:
        s_cmp_lt_u32 s50, {8*(D-1)}
        s_cbranch_scc0 L_kdyn2
        s_add_u32 s50, s50, 8
        s_mov_b64 exec, 1
        ds_add_rtn_u32 v7, v5, v6
        s_mov_b64 exec, -1
        s_branch L_kloop
        L_kdyn2:
        s_waitcnt lgkmcnt(0)
        v_readfirstlane_b32 s49, v7
        s_mov_b64 exec, 1
        ds_add_rtn_u32 v7, v5, v6
        s_cmp_lt_u32 s50, {8*D}
        s_cbranch_scc0 L_knosig
        ds_add_u32 v5, v6 offset:{F_WQ-F_T}
        L_knosig:
        s_mov_b64 exec, -1
        s_add_u32 s50, s49, {8*D}
        s_cmp_lt_u32 s50, 128
        s_cbranch_scc1 L_kloop
        s_mul_i32 s46, s34, 3
        s_add_u32 s46, s46, s51
        s_and_b32 s46, s46, 15
        s_lshl_b32 s46, s46, 10
        s_movk_i32 s48, 0x400
        s_movk_i32 s49, 0x3fff
        s_waitcnt lgkmcnt(0)
        """)
        self.stamp(2)
        VB = 64
        DV = self.opt("depthv", D)
        def vload(n):
            A(f"""
            buffer_load_dwordx4 v[{VB+4*n}:{VB+4*n+3}], v1, s[40:43], s46 offen nt
            s_add_u32 s46, s46, s48
            s_and_b32 s46, s46, s49
            """)
        for n in range(D):
            A(f"s_waitcnt vmcnt({D-1})")
            if n == D - 1:
                self.lds_signal(F_K, 4)
            vload(n)
        self.S_setup()
        cls = [("light", self.opt("pl", 3), self.opt("nl", 14)), ("mlp", self.opt("pm", 6), self.opt("nm", 12)), ("own", self.opt("po", 0), self.opt("no", 12))]
        A("""
        s_cmp_ge_u32 s96, 240
        s_cbranch_scc1 L_v_own
        s_cmp_lt_u32 s96, 144
        s_cbranch_scc1 L_v_mlp
        """)
        for name, p, lim in cls:
            A(f"L_v_{name}:")
            for n in range(D, 16):
                if p and n < lim:
                    A(f"s_waitcnt vmcnt({p-1})")
                vload(n)
            if name != "own":
                A("s_branch L_v_done")
        A("L_v_done:")
        if self.opt("wolast", 0):
            self.lds_signal(F_VI, 4)
        self.stamp(3)
        self.lds_wait(F_P, 4, 4, sleep=1)
        self.stamp(4)
        A(f"""
        s_setprio 3
        ds_read_b128 v[16:19], v12
        ds_read_b128 v[20:23], v12 offset:16
        ds_read_b128 v[24:27], v12 offset:32
        ds_read_b128 v[28:31], v12 offset:48
        """)
        self.read_tag(4)
        A(f"""
        v_mov_b32 v41, s60
        v_mov_b32 v43, s61
        v_mov_b32 v45, s60
        v_mov_b32 v47, s61
        """)
        for n in range(16):
            a = 36 if n % 2 == 0 else 4
            A(f"""
            v_and_b32 v{a}, v{16+n}, v8
            v_and_b32 v{a+1}, v{16+n}, v9
            v_and_b32 v{a+2}, v{16+n}, v10
            v_and_b32 v{a+3}, v{16+n}, v11
            s_waitcnt vmcnt({15-n})
            s_nop 0
            v_mfma_f32_16x16x32_bf16 v[32:35], v[{a}:{a+3}], v[{VB+4*n}:{VB+4*n+3}], v[32:35]
            """)
        self.stamp(9)
        A(f"""
        v_mov_b32 v8, {F_O}
        v_mov_b32 v9, 1
        s_nop 5
        ds_write_b128 v15, v[32:35]
        s_mov_b64 exec, 1
        ds_add_rtn_u32 v9, v8, v9
        s_mov_b64 exec, -1
        ds_read_b32 v10, v8 offset:{F_F-F_O}
        ds_read_b128 v[36:39], v59
        """)
        for i in range(8):
            A(f"ds_read_b128 v[{64+4*i}:{67+4*i}], v14 offset:{1024*i}")
        A("""
        s_waitcnt lgkmcnt(9)
        v_readfirstlane_b32 s47, v9
        v_readfirstlane_b32 s46, v10
        s_nop 0
        s_cmp_lg_u32 s47, 7
        s_cbranch_scc1 L_S_notlast
        """)
        if self.opt("notail", 0): A("s_branch L_end")
        ld = "\n".join(f"global_load_dwordx4 v[{96+4*i}:{99+4*i}], v{48+i}, s[28:29] sc1" for i in range(3))
        A(ld)
        for i in range(0, 8, 2):
            A(f"""
            s_waitcnt lgkmcnt({6-i})
            v_pk_add_f32 v[{64+4*i}:{65+4*i}], v[{64+4*i}:{65+4*i}], v[{68+4*i}:{69+4*i}]
            v_pk_add_f32 v[{66+4*i}:{67+4*i}], v[{66+4*i}:{67+4*i}], v[{70+4*i}:{71+4*i}]
            """)
            if i in (2, 6):
                b = 64 + 4 * (i - 2)
                A(f"""
                v_pk_add_f32 v[{b}:{b+1}], v[{b}:{b+1}], v[{b+8}:{b+9}]
                v_pk_add_f32 v[{b+2}:{b+3}], v[{b+2}:{b+3}], v[{b+10}:{b+11}]
                """)
        A(f"""
        v_pk_add_f32 v[64:65], v[64:65], v[80:81]
        v_pk_add_f32 v[66:67], v[66:67], v[82:83]
        s_cmp_eq_u32 s46, {2 if self.opt('local', 1) else 99}
        v_cvt_pk_bf16_f32 v40, v64, v65
        v_cvt_pk_bf16_f32 v42, v66, v67
        s_cbranch_scc1 L_opub_local
        global_store_dwordx4 v13, v[40:43], s[28:29] sc1
        s_branch L_opub_done
        L_opub_local:
        global_store_dwordx4 v13, v[40:43], s[28:29]
        L_opub_done:
        """)
        self.stamp(5)
        A("s_cmp_lg_u32 s46, 0\ns_cbranch_scc1 L_fok")
        self.lds_wait(F_F, 1, 10)
        A(f"""
        ds_read_b128 v[36:39], v59
        s_waitcnt lgkmcnt(0)
        L_fok:
        v_mul_f32 v64, v64, v36
        v_mul_f32 v65, v65, v36
        v_mul_f32 v66, v66, v36
        v_mul_f32 v67, v67, v36
        v_mov_b32 v9, 1
        L_opoll:
        """)
        A(ld)
        self.guard(64)
        A("s_waitcnt vmcnt(3)")
        self.tagchk([96 + 4 * i for i in range(3)], 16, 17)
        A("s_cbranch_vccnz L_opoll")
        for i in range(3):
            A(f"""
            v_lshlrev_b32 v16, 16, v{96+4*i}
            v_and_b32 v17, 0xffff0000, v{96+4*i}
            v_lshlrev_b32 v18, 16, v{98+4*i}
            v_and_b32 v19, 0xffff0000, v{98+4*i}
            v_fmac_f32 v64, v16, v{37+i}
            v_fmac_f32 v65, v17, v{37+i}
            v_fmac_f32 v66, v18, v{37+i}
            v_fmac_f32 v67, v19, v{37+i}
            """)
        A(f"""
        v_cvt_pk_bf16_f32 v64, v64, v65
        v_cvt_pk_bf16_f32 v65, v66, v67
        ds_write_b64 v58, v[64:65]
        s_mov_b64 exec, 1
        ds_write_b32 v8, v9 offset:{F_OB-F_O}
        s_mov_b64 exec, -1
        """)
        self.stamp(12)
        A(f"""
        s_branch L_end
        L_S_notlast:
        s_cmp_lt_u32 s47, 4
        s_cbranch_scc0 L_end
        s_add_u32 s56, s47, 4
        s_mov_b32 s57, 0
        """)

    def S_setup(self):
        A = self.A
        A(f"""
        v_and_b32 v4, 1, v0
        v_cmp_eq_u32 vcc, 1, v4
        v_mov_b32 v5, 0xffff
        v_mov_b32 v6, 0xffff0000
        v_bfe_u32 v4, v0, 1, 2
        v_cndmask_b32 v5, v5, v6, vcc
        """)
        for i in range(4):
            A(f"v_cmp_eq_u32 vcc, {i}, v4\ns_nop 1\nv_cndmask_b32 v{8+i}, 0, v5, vcc")
        A(f"""
        v_bfe_u32 v4, v0, 3, 1
        v_lshlrev_b32 v4, 11, v4
        v_lshl_add_u32 v4, v2, 6, v4
        s_lshl_b32 s44, s34, 8
        s_add_u32 s44, s44, {PB}
        v_add_u32 v12, s44, v4
        v_mov_b32 v32, 0
        v_mov_b32 v33, 0
        v_mov_b32 v34, 0
        v_mov_b32 v35, 0
        v_and_b32 v5, 15, v0
        s_lshl_b32 s44, s35, 12
        s_add_u32 s44, s44, {W_O}
        s_lshl_b32 s45, s33, 10
        s_add_u32 s47, s45, s44
        v_add_u32 v13, s47, v1
        """)
        for i in range(3):
            A(f"""
            s_add_u32 s45, s45, 0x400
            s_and_b32 s45, s45, 0xfff
            s_add_u32 s47, s45, s44
            v_add_u32 v{48+i}, s47, v1
            """)
        A(f"""
        v_add_u32 v14, {OPART}, v1
        v_lshrrev_b32 v4, 5, v0
        v_lshlrev_b32 v59, 4, v4
        v_add_u32 v59, {FB}, v59
        v_lshlrev_b32 v4, 9, v4
        v_lshl_add_u32 v4, v5, 5, v4
        v_bfe_u32 v5, v0, 4, 1
        v_lshl_add_u32 v4, v5, 4, v4
        s_lshl_b32 s44, s34, 10
        s_add_u32 s44, s44, {OPART}
        v_add_u32 v15, s44, v4
        v_lshrrev_b32 v6, 3, v0
        v_lshlrev_b32 v6, 6, v6
        v_and_b32 v7, 3, v0
        v_lshl_add_u32 v6, v7, 4, v6
        v_bfe_u32 v7, v0, 2, 1
        v_lshl_add_u32 v6, v7, 3, v6
        v_add_u32 v58, {OB}, v6
        """)

    def gen_proj(self):
        A = self.A
        A("L_proj:")
        if self.opt("notail", 0):
            A("s_branch L_end")
        A(f"""
        s_setprio 0
        v_bfe_u32 v5, v0, 2, 2
        v_lshl_add_u32 v6, v2, 2, v5
        v_and_b32 v7, 3, v0
        v_lshlrev_b32 v7, 3, v7
        v_and_b32 v8, 7, v6
        v_xor_b32 v8, s56, v8
        v_lshl_add_u32 v8, v8, 5, v7
        v_lshl_add_u32 v50, v6, 8, v8
        v_bfe_u32 v8, v6, 1, 2
        v_xor_b32 v8, s3, v8
        v_and_b32 v8, 3, v8
        v_lshl_add_u32 v8, v8, 5, v7
        v_lshl_add_u32 v51, v6, 7, v8
        v_add_u32 v51, {WO8}, v51
        v_lshlrev_b32 v48, 4, v2
        v_add_u32 v48, {OB}, v48
        s_mul_i32 s44, s32, 36
        s_lshl_b32 s45, s33, 3
        s_add_u32 s45, s45, s56
        s_add_u32 s45, s45, s44
        s_lshl_b32 s45, s45, 11
        s_add_u32 s44, s44, s3
        s_add_u32 s44, s44, 32
        s_lshl_b32 s44, s44, 11
        v_mov_b32 v6, s45
        v_mov_b32 v7, s44
        v_cmp_eq_u32 s[54:55], 1, v2
        v_and_b32 v8, 1, v0
        v_cmp_eq_u32 vcc, 1, v8
        v_cndmask_b32 v6, v6, v7, s[54:55]
        v_mov_b32 v61, s60
        v_mov_b32 v63, s61
        v_cndmask_b32 v61, v61, v63, vcc
        s_lshl_b32 s44, s30, 7
        s_add_u32 s44, s44, {W_S}
        v_and_b32 v7, 15, v0
        v_lshl_add_u32 v6, v7, 3, v6
        v_add_u32 v54, s44, v6
        """)
        self.lds_wait(F_WO, 4, 4, sleep=1)
        self.stamp(6)
        for k in range(8):
            if k == 4: A("s_waitcnt lgkmcnt(4)")
            A(f"ds_read_b64_tr_b16 v[{64+4*k}:{65+4*k}], v50 offset:{8192*k}")
            A(f"ds_read_b64_tr_b16 v[{66+4*k}:{67+4*k}], v50 offset:{8192*k+4096}")
        A("s_cmp_eq_u32 s57, 0\ns_cbranch_scc1 L_no8a\ns_waitcnt lgkmcnt(0)")
        for k in range(8):
            if k == 4: A("s_waitcnt lgkmcnt(4)")
            A(f"ds_read_b64_tr_b16 v[{96+4*k}:{97+4*k}], v51 offset:{4096*k}")
            A(f"ds_read_b64_tr_b16 v[{98+4*k}:{99+4*k}], v51 offset:{4096*k+2048}")
        A("L_no8a:\ns_waitcnt lgkmcnt(0)")
        self.lds_wait(F_O, 8, 6, sleep=1)
        A(f"""
        v_mov_b32 v4, {F_OB}
        L_obwait:
        ds_read_b32 v5, v4
        ds_read_b128 v[16:19], v48
        ds_read_b128 v[20:23], v48 offset:64
        """)
        self.guard(1)
        A("""
        s_waitcnt lgkmcnt(2)
        v_readfirstlane_b32 s46, v5
        s_nop 0
        s_cmp_eq_u32 s46, 0
        s_cbranch_scc1 L_obwait
        """)
        for k in range(2, 8):
            A(f"ds_read_b128 v[{16+4*k}:{19+4*k}], v48 offset:{64*k}")
        A("s_cmp_eq_u32 s57, 0\ns_cbranch_scc0 L_proj2")
        for k in range(8):
            A(f"s_waitcnt lgkmcnt({min(6, 7-k)})")
            c = "0" if k == 0 else "v[8:11]"
            A(f"v_mfma_f32_16x16x32_bf16 v[8:11], v[{16+4*k}:{19+4*k}], v[{64+4*k}:{67+4*k}], {c}")
        A("""
        s_mov_b64 exec, 0xffff
        s_nop 6
        v_mov_b32 v60, v8
        global_store_dwordx2 v54, v[60:61], s[28:29] sc1
        s_mov_b64 exec, -1
        """)
        self.stamp(8)
        A("s_branch L_end\nL_proj2:")
        for k in range(8):
            A(f"s_waitcnt lgkmcnt({min(6, 7-k)})")
            c = "0" if k == 0 else "v[8:11]"
            c2 = "0" if k == 0 else "v[12:15]"
            A(f"v_mfma_f32_16x16x32_bf16 v[8:11], v[{16+4*k}:{19+4*k}], v[{64+4*k}:{67+4*k}], {c}")
            A(f"v_mfma_f32_16x16x32_bf16 v[12:15], v[{16+4*k}:{19+4*k}], v[{96+4*k}:{99+4*k}], {c2}")
        A("""
        s_mov_b32 exec_hi, 0
        s_nop 6
        v_cndmask_b32 v60, v8, v12, s[54:55]
        global_store_dwordx2 v54, v[60:61], s[28:29] sc1
        s_mov_b64 exec, -1
        """)
        self.stamp(8)
        A("s_branch L_end")

    def gen_LN(self):
        A = self.A
        A("L_ln:")
        A("""
        v_add_f32 v31, v22, v23
        v_add_f32 v32, v24, v25
        v_add_f32 v33, v26, v27
        v_add_f32 v31, v31, v32
        v_add_f32 v32, v28, v29
        v_add_f32 v33, v33, v30
        v_add_f32 v31, v31, v32
        v_add_f32 v31, v31, v33
        """)
        self.wave_sum(31, 44)
        A("v_mov_b32 v31, 0x3ae38e39\nv_mul_f32 v31, s44, v31\nv_mov_b32 v32, 0")
        for i in range(22, 31):
            A(f"v_sub_f32 v33, v{i}, v31\nv_fmac_f32 v32, v33, v33")
        self.wave_sum(32, 45)
        self.rb(31)
        A("v_mov_b32 v32, 0x3ae38e39\nv_mul_f32 v32, s45, v32")
        self.rb(32)
        A("v_add_f32 v32, 0x3727c5ac, v32")
        self.rb(32)
        A("v_sqrt_f32 v32, v32\ns_nop 0")
        self.rb(32)
        A("v_rcp_f32 v32, v32")
        for i in range(22, 31):
            A(f"v_sub_f32 v{i}, v{i}, v31")
        for i in range(22, 30, 2):
            self.rb2(i, i + 1)
        self.rb(30)
        for i in range(22, 31):
            A(f"v_mul_f32 v{i}, v{i}, v32")
        for i in range(22, 30, 2):
            self.rb2(i, i + 1)
        self.rb(30)
        A("s_setpc_b64 s[50:51]")

    def unpack9(self, src, s9):
        for i in range(4):
            self.A(f"v_lshlrev_b32 v{22+2*i}, 16, v{src+i}\nv_and_b32 v{23+2*i}, 0xffff0000, v{src+i}")
        self.A(f"v_lshlrev_b32 v30, 16, v{s9}")

    def gen_A(self):
        A = self.A
        A(f"""
        L_A:
        s_add_u32 s44, s44, {XN}
        v_add_u32 v11, s44, v1
        v_add_u32 v12, s44, v14
        s_waitcnt vmcnt(0)
        """)
        self.stamp(1)
        self.unpack9(16, 20)
        A("s_call_b64 s[50:51], L_ln")
        A(f"""
        v_cvt_pk_bf16_f32 v16, v22, v23
        v_cvt_pk_bf16_f32 v17, v24, v25
        v_cvt_pk_bf16_f32 v18, v26, v27
        v_cvt_pk_bf16_f32 v19, v28, v29
        v_lshrrev_b32 v20, 16, v30
        ds_write_b128 v11, v[16:19]
        ds_write_b16 v12, v20 offset:1024
        s_waitcnt lgkmcnt(0)
        s_add_u32 s60, s60, 0x7f4a7c15
        s_addc_u32 s61, s61, 0x9e3779b9
        s_cmp_lg_u32 s3, 0
        s_cbranch_scc1 L_A_notag
        v_mov_b32 v11, {TAG}
        v_mov_b32 v12, s60
        v_mov_b32 v13, s61
        ds_write_b64 v11, v[12:13]
        L_A_notag:
        """)
        self.lds_signal(F_X, 4)
        self.stamp(2)
        A("s_cmp_lg_u32 s3, 0\ns_cbranch_scc1 L_A_poll")
        A(f"""
        v_bfe_u32 v3, v0, 2, 2
        v_lshl_add_u32 v4, v2, 2, v3
        v_bfe_u32 v5, v4, 1, 2
        v_lshlrev_b32 v5, 5, v5
        v_lshl_add_u32 v5, v4, 7, v5
        v_and_b32 v6, 3, v0
        v_lshl_add_u32 v5, v6, 3, v5
        v_add_u32 v8, {WQ}, v5
        v_xor_b32 v9, 32, v8
        v_xor_b32 v10, 64, v8
        v_xor_b32 v11, 0x60, v8
        v_mul_u32_u24 v12, 1152, v3
        v_lshl_add_u32 v12, v2, 3, v12
        s_mul_i32 s44, s32, 288
        s_add_u32 s44, s44, {XN}
        v_add_u32 v12, s44, v12
        s_lshl_b32 s44, s30, 15
        s_lshl_b32 s45, s32, 11
        s_add_u32 s44, s44, s45
        s_lshl_b32 s45, s33, 9
        s_add_u32 s44, s44, s45
        s_add_u32 s44, s44, {W_Q}
        v_lshlrev_b32 v13, 13, v2
        v_and_b32 v4, 15, v0
        v_lshl_add_u32 v13, v4, 4, v13
        v_add_u32 v13, s44, v13
        v_mov_b32 v53, s60
        v_mov_b32 v55, s61
        """)
        self.lds_wait(F_X, 4, 4)
        for k in range(4):
            A(f"ds_read2_b64 v[{16+4*k}:{19+4*k}], v12 offset0:{8*k} offset1:{8*k+4}")
        A("ds_read_b64 v[32:33], v12 offset:256\nv_mov_b32 v5, s60\nv_mov_b32 v7, s61")
        self.lds_wait(F_WQ, 8, 14)
        self.stamp(3)
        reads = []
        for ct in range(4):
            base = 56 + 18 * ct
            for k in range(4):
                reads.append(f"ds_read_b64_tr_b16 v[{base+4*k}:{base+4*k+1}], v{8+ct} offset:{4096*k}")
                reads.append(f"ds_read_b64_tr_b16 v[{base+4*k+2}:{base+4*k+3}], v{8+ct} offset:{4096*k+2048}")
            reads.append(f"ds_read_b64_tr_b16 v[{base+16}:{base+17}], v{8+ct} offset:16384")
        pos = 0
        for ct in range(4):
            upto = min(36, 9 * (ct + 1) + 5)
            while pos < upto:
                A(reads[pos]); pos += 1
            base = 56 + 18 * ct
            d = f"v[{36+4*ct}:{39+4*ct}]"
            A(f"s_waitcnt lgkmcnt({5 if ct < 3 else 0})")
            A(f"v_mfma_f32_16x16x16_bf16 {d}, v[32:33], v[{base+16}:{base+17}], 0")
            A("s_nop 5")
            for k in range(4):
                A(f"v_mfma_f32_16x16x32_bf16 {d}, v[{16+4*k}:{19+4*k}], v[{base+4*k}:{base+4*k+3}], {d}")
        qp = self.opt("qst", "sc1")
        if self.opt("noq", 0) < 2: A(f"""
        v_mov_b32 v4, v36
        v_mov_b32 v6, v40
        v_mov_b32 v52, v44
        {'' if self.opt('qhalf', 0) else 'global_store_dwordx4 v13, v[4:7], s[28:29] ' + qp}
        s_nop 4
        v_mov_b32 v54, v48
        global_store_dwordx4 v13, v[52:55], s[28:29] offset:256 {qp}
        """)
        self.stamp(4)
        self.lds_signal(F_QP, 8)
        A("L_A_poll:")
        A(f"""
        s_lshl_b32 s44, s30, 15
        s_lshl_b32 s45, s32, 13
        s_add_u32 s44, s44, s45
        s_lshl_b32 s45, s3, 9
        s_add_u32 s44, s44, s45
        s_add_u32 s44, s44, {W_Q}
        s_add_u32 s48, s28, s44
        s_addc_u32 s49, s29, 0
        v_lshrrev_b32 v20, 5, v0
        v_and_b32 v3, 31, v0
        v_lshlrev_b32 v21, 12, v20
        v_lshl_add_u32 v21, v3, 4, v21
        v_add_u32 v21, s44, v21
        s_lshl_b32 s44, s3, 7
        s_add_u32 s44, s44, {QS}
        v_and_b32 v3, 15, v0
        v_lshlrev_b32 v22, 1, v3
        v_lshl_add_u32 v22, v20, 5, v22
        v_bfe_u32 v23, v0, 4, 1
        v_lshl_add_u32 v22, v23, 6, v22
        v_add_u32 v22, s44, v22
        v_bfe_u32 v24, v0, 3, 1
        v_lshlrev_b32 v24, 8, v24
        v_lshl_add_u32 v24, v2, 4, v24
        v_add_u32 v24, {QS}, v24
        v_and_b32 v25, 3, v0
        v_bfe_u32 v26, v0, 2, 2
        v_lshl_add_u32 v25, v25, 2, v26
        v_lshlrev_b32 v25, 8, v25
        v_xor_b32 v26, v2, v3
        v_lshl_add_u32 v25, v26, 4, v25
        s_lshl_b32 s44, s3, 15
        v_add_u32 v28, s44, v25
        v_xor_b32 v29, 64, v28
        v_xor_b32 v30, 0x80, v28
        v_xor_b32 v31, 0xc0, v28
        """)
        self.lds_wait(F_QP, 1, 8, sleep=2)
        if self.opt("qtk", 0):
            self.lds_wait(F_T, self.opt("qtk", 0), 8, sleep=2)
            A("s_branch L_qpoll")
        A(f"""
        {'s_branch L_qskip' if self.opt('noq', 0) else ''}
        L_qsp:
        s_load_dwordx2 s[52:53], s[48:49], 0x1f8 glc
        s_load_dwordx2 s[54:55], s[48:49], 0x9f8 glc
        s_load_dwordx2 s[56:57], s[48:49], 0x11f8 glc
        s_load_dwordx2 s[58:59], s[48:49], 0x19f8 glc
        """)
        self.guard(16)
        A(f"""
        s_sleep {self.opt('qsleep', 2)}
        s_waitcnt lgkmcnt(0)
        s_xor_b32 s53, s53, s61
        s_xor_b32 s55, s55, s61
        s_xor_b32 s57, s57, s61
        s_xor_b32 s59, s59, s61
        s_or_b32 s53, s53, s55
        s_or_b32 s57, s57, s59
        s_or_b32 s53, s53, s57
        s_cbranch_scc1 L_qsp
        {'s_mov_b32 exec_lo, 0xffff0000' if self.opt('qhalf', 0) else ''}
        {'s_mov_b32 exec_hi, 0xffff0000' if self.opt('qhalf', 0) else ''}
        L_qpoll:
        global_load_dwordx4 v[8:11], v21, s[28:29] sc1
        global_load_dwordx4 v[12:15], v21, s[28:29] offset:2048 sc1
        """)
        self.guard(64)
        A("s_waitcnt vmcnt(0)")
        self.tagchk([8, 12], 16, 17)
        A("""
        s_cbranch_vccnz L_qpoll
        L_qskip:
        s_mov_b64 exec, -1
        v_add_f32 v8, v8, v12
        v_add_f32 v10, v10, v14
        s_nop 1
        v_permlane32_swap_b32 v8, v10
        v_add_f32 v8, v8, v10
        v_cvt_pk_bf16_f32 v8, v8, v8
        ds_write_b16 v22, v8
        """)
        self.lds_signal(F_Q, 6)
        self.stamp(5)
        self.lds_wait(F_Q, 4, 6)
        for t in range(4):
            A(f"ds_read_b128 v[{8+4*t}:{11+4*t}], v24 offset:{64*t}")
        self.lds_wait(F_K, 8, 6, sleep=1)
        self.stamp(6)

        def kread(tau):
            for t in range(4):
                r = 64 + ((tau % 4) * 4 + t) * 4
                A(f"ds_read_b128 v[{r}:{r+3}], v{28+t} offset:{4096*tau}")
        for tau in range(2):
            kread(tau)
        for tau in range(8):
            if tau + 2 < 8:
                kread(tau + 2)
            out = min(2, 7 - tau) * 4
            for t in range(4):
                r = 64 + ((tau % 4) * 4 + t) * 4
                A(f"s_waitcnt lgkmcnt({out + 3 - t})")
                c = "0" if t == 0 else f"v[{32+4*tau}:{35+4*tau}]"
                A(f"v_mfma_f32_16x16x32_bf16 v[{32+4*tau}:{35+4*tau}], v[{r}:{r+3}], v[{8+4*t}:{11+4*t}], {c}")
        A("s_mov_b32 s44, 0x02020202")
        for tau in range(1, 8):
            A(f"""
            s_mov_b32 exec_lo, s44
            s_mov_b32 exec_hi, s44
            v_mov_b32 v32, v{32+4*tau}
            v_mov_b32 v33, v{33+4*tau}
            v_mov_b32 v34, v{34+4*tau}
            v_mov_b32 v35, v{35+4*tau}
            s_lshl_b32 s44, s44, 1
            """)
        A("s_mov_b64 exec, -1\nv_mov_b32 v20, 0x3db504f3")
        for i in (32, 34):
            self.rb2(i, i + 1)
            A(f"v_mul_f32 v{i}, v{i}, v20\nv_mul_f32 v{i+1}, v{i+1}, v20")
            self.rb2(i, i + 1)
        mx = "v_max_f32_dpp v3, v3, v3"
        A(f"""
        v_max_f32 v3, v32, v33
        v_max3_f32 v3, v3, v34, v35
        v_bfe_u32 v5, v0, 3, 1
        v_lshlrev_b32 v5, 4, v5
        {mx} quad_perm:[1,0,3,2] {DPPF}
        v_add_u32 v5, {MA}, v5
        s_lshl_b32 s44, s3, 2
        {mx} quad_perm:[2,3,0,1] {DPPF}
        v_add_u32 v6, s44, v5
        s_nop 0
        {mx} row_half_mirror {DPPF}
        """)
        self.xlane45(3, 4, "max")
        A("ds_write_b32 v6, v3")
        self.lds_signal(F_M, 8)
        A(f"""
        v_bfe_u32 v7, v0, 3, 1
        v_lshlrev_b32 v7, 11, v7
        v_lshl_add_u32 v7, v2, 6, v7
        v_bfe_u32 v8, v0, 2, 1
        v_lshl_add_u32 v7, v8, 8, v7
        v_and_b32 v8, 3, v0
        v_lshl_add_u32 v7, v8, 4, v7
        s_lshl_b32 s44, s3, 9
        s_add_u32 s44, s44, {PB}
        v_add_u32 v14, s44, v7
        """)
        self.lds_wait(F_M, 4, 8)
        sm = "v_add_f32_dpp v12, v12, v12"
        A(f"""
        ds_read_b128 v[8:11], v5
        v_mov_b32 v20, 0x3fb8aa3b
        s_waitcnt lgkmcnt(0)
        v_max_f32 v3, v8, v9
        v_max3_f32 v3, v3, v10, v11
        v_mul_f32 v4, v3, v20
        v_fma_f32 v32, v32, v20, -v4
        v_fma_f32 v33, v33, v20, -v4
        v_fma_f32 v34, v34, v20, -v4
        v_fma_f32 v35, v35, v20, -v4
        v_exp_f32 v32, v32
        v_exp_f32 v33, v33
        v_exp_f32 v34, v34
        v_exp_f32 v35, v35
        v_add_f32 v12, v32, v33
        v_cvt_pk_bf16_f32 v36, v32, v32
        v_add_f32 v13, v34, v35
        v_cvt_pk_bf16_f32 v37, v33, v33
        v_add_f32 v12, v12, v13
        v_cvt_pk_bf16_f32 v38, v34, v34
        v_cvt_pk_bf16_f32 v39, v35, v35
        {sm} quad_perm:[1,0,3,2] {DPPF}
        ds_write_b128 v14, v[36:39]
        s_nop 0
        {sm} quad_perm:[2,3,0,1] {DPPF}
        s_nop 1
        {sm} row_half_mirror {DPPF}
        """)
        self.xlane45(12, 13, "add")
        A(f"ds_write_b32 v6, v12 offset:{LA-MA}")
        self.lds_signal(F_P, 6, rtn=True)
        A(f"""
        s_getreg_b32 s63, hwreg(HW_REG_XCC_ID, 0, 4)
        s_waitcnt lgkmcnt(0)
        v_readfirstlane_b32 s46, v7
        s_nop 0
        s_cmp_lg_u32 s46, 3
        s_cbranch_scc1 L_A_noml
        ds_read_b128 v[12:15], v5 offset:{LA-MA}
        s_xor_b32 s45, s61, s63
        v_mov_b32 v8, v3
        v_mov_b32 v9, s60
        v_mov_b32 v11, s45
        s_lshl_b32 s44, s35, 7
        s_lshl_b32 s45, s33, 4
        s_add_u32 s44, s44, s45
        s_add_u32 s44, s44, {W_ML}
        v_bfe_u32 v5, v0, 3, 1
        v_lshlrev_b32 v5, 6, v5
        v_add_u32 v5, s44, v5
        s_mov_b64 exec, 0x101
        s_waitcnt lgkmcnt(0)
        v_add_f32 v12, v12, v13
        v_add_f32 v14, v14, v15
        v_add_f32 v10, v12, v14
        global_store_dwordx4 v5, v[8:11], s[28:29] sc1
        s_mov_b64 exec, -1
        L_A_noml:
        """)
        self.stamp(9)
        A(f"""
        s_lshl_b32 s44, s30, 8
        s_lshl_b32 s45, s3, 6
        s_add_u32 s44, s44, s45
        s_mul_i32 s44, s44, 1152
        s_add_u32 s40, s12, s44
        s_addc_u32 s41, s13, 0
        s_mov_b32 s42, {64*1152}
        v_lshrrev_b32 v20, 3, v0
        v_bfe_u32 v3, v0, 4, 2
        v_lshlrev_b32 v3, 1, v3
        v_and_b32 v4, 7, v0
        v_xor_b32 v3, v3, v4
        v_lshlrev_b32 v3, 4, v3
        v_mul_u32_u24 v20, 1152, v20
        v_add_u32 v20, v20, v3
        v_add_u32 v20, 0x400, v20
        v_and_b32 v3, 15, v0
        v_lshlrev_b32 v3, 4, v3
        v_lshlrev_b32 v4, 5, v2
        v_xor_b32 v3, v3, v4
        v_xor_b32 v4, 0x80, v3
        v_mul_u32_u24 v21, 1152, v2
        s_lshl_b32 s45, s33, 8
        v_add3_u32 v22, v21, v4, s45
        v_add3_u32 v21, v21, v3, s45
        v_add_u32 v22, {4*1152}, v22
        s_mov_b32 s56, s3
        s_cmp_eq_u32 s33, s32
        s_cselect_b32 s57, 1, 0
        """)
        self.lds_wait(F_P, 4, 6)
        self.stamp(10)
        wp = self.opt("wo", "")
        A(f"""
        s_lshl_b32 m0, s3, 14
        s_mov_b32 s44, 0
        L_woloop:
        buffer_load_dwordx4 v21, s[40:43], s44 offen {wp} lds
        s_add_u32 m0, m0, 0x400
        s_nop 0
        buffer_load_dwordx4 v22, s[40:43], s44 offen {wp} lds
        s_add_u32 m0, m0, 0x400
        s_add_u32 s44, s44, {8*1152}
        s_cmp_lt_u32 s44, {64*1152}
        s_cbranch_scc1 L_woloop
        s_cmp_eq_u32 s57, 0
        s_cbranch_scc1 L_wo8done
        s_lshl_b32 s44, s3, 13
        s_add_u32 m0, s44, {WO8}
        s_mov_b32 s44, 0
        L_wo8:
        buffer_load_dwordx4 v20, s[40:43], s44 offen {wp} lds
        s_add_u32 m0, m0, 0x400
        s_add_u32 s44, s44, {8*1152}
        s_cmp_lt_u32 s44, {64*1152}
        s_cbranch_scc1 L_wo8
        L_wo8done:
        s_cmp_lg_u32 s3, 0
        s_cbranch_scc1 L_A_wowait
        """)
        if self.opt("noml", 0): A("s_branch L_A_wowait")
        A(f"""
        s_lshl_b32 s44, s35, 12
        s_lshl_b32 s45, s33, 10
        s_add_u32 s44, s44, s45
        s_add_u32 s44, s44, {W_O}
        v_add_u32 v3, s44, v1
        global_load_dwordx4 v[24:27], v3, s[28:29] sc1
        s_lshl_b32 s45, s35, 7
        s_add_u32 s45, s45, {W_ML}
        s_add_u32 s48, s28, s45
        s_addc_u32 s49, s29, 0
        v_subrev_u32 v15, s33, v2
        v_and_b32 v15, 3, v15
        v_lshlrev_b32 v15, 2, v15
        v_add_u32 v15, {FB}, v15
        s_mov_b32 s58, 0
        L_mlpoll:
        s_load_dwordx16 s[4:19], s[48:49], 0 glc
        """)
        self.guard(16)
        A("s_sleep 2\ns_waitcnt lgkmcnt(0)\ns_mov_b32 s44, 0\ns_mov_b32 s47, 0")
        for i in range(4):
            A(f"""
            s_xor_b32 s45, s{4+4*i+1}, s60
            s_or_b32 s44, s44, s45
            s_xor_b32 s45, s{4+4*i+3}, s61
            s_xor_b32 s46, s45, s63
            s_or_b32 s47, s47, s46
            s_lshr_b32 s45, s45, 4
            s_or_b32 s44, s44, s45
            """)
        A(f"""
        s_cbranch_scc1 L_mlpoll
        v_mov_b32 v8, s4
        v_mov_b32 v10, s6
        v_mov_b32 v9, s8
        v_mov_b32 v11, s10
        v_cmp_eq_u32 vcc, 1, v2
        v_mov_b32 v12, s12
        v_mov_b32 v13, s14
        v_cndmask_b32 v8, v8, v9, vcc
        v_cndmask_b32 v10, v10, v11, vcc
        v_cmp_eq_u32 vcc, 2, v2
        v_mov_b32 v9, s16
        v_mov_b32 v11, s18
        v_cndmask_b32 v8, v8, v12, vcc
        v_cndmask_b32 v10, v10, v13, vcc
        v_cmp_eq_u32 vcc, 3, v2
        s_nop 1
        v_cndmask_b32 v8, v8, v9, vcc
        v_cndmask_b32 v10, v10, v11, vcc
        v_mov_b32 v12, v8
        """)
        self.xlane45(12, 13, "max")
        A("""
        v_sub_f32 v12, v8, v12
        v_mul_f32 v12, 0x3fb8aa3b, v12
        v_exp_f32 v12, v12
        s_nop 0
        v_mul_f32 v13, v12, v10
        """)
        self.xlane45(13, 14, "add")
        A(f"""
        v_rcp_f32 v13, v13
        s_add_u32 s48, s48, 64
        s_addc_u32 s49, s49, 0
        v_mul_f32 v12, v12, v13
        ds_write_b32 v15, v12
        v_add_u32 v15, 16, v15
        s_add_u32 s58, s58, 1
        s_cmp_lt_u32 s58, 2
        s_cbranch_scc1 L_mlpoll
        s_cmp_eq_u32 s47, 0
        s_cselect_b32 s44, 2, 1
        v_mov_b32 v8, {F_F}
        v_mov_b32 v9, s44
        ds_write_b32 v8, v9
        """)
        self.stamp(11)
        A("L_A_wowait:\ns_waitcnt vmcnt(0)")
        self.lds_signal(F_WO, 6)
        A("s_branch L_proj")

    def gen_M(self):
        A = self.A
        A(f"""
        L_M2:
        s_mul_i32 s58, s96, 1821
        s_lshr_b32 s58, s58, 16
        s_mul_i32 s59, s58, 36
        s_sub_u32 s59, s96, s59
        s_lshl_b32 s44, s34, 6
        v_add_u32 v13, s44, v0
        v_lshlrev_b32 v14, 2, v13
        v_lshlrev_b32 v13, 4, v13
        v_add_u32 v15, 0x1000, v13
        v_add_u32 v14, 0x2000, v14
        v_and_b32 v92, 7, v0
        v_lshrrev_b32 v3, 5, v0
        v_lshl_add_u32 v92, v92, 1, v3
        s_mul_i32 s44, s58, 1152
        s_lshl_b32 s45, s59, 5
        s_add_u32 s44, s44, s45
        v_lshlrev_b32 v93, 1, v92
        v_add_u32 v93, s44, v93
        v_mov_b32 v95, 0
        """)
        self.lds_wait(F_X, 4, 4, sleep=1)
        for (p, r) in (("s[16:17]", 96), ("s[18:19]", 106), ("s[20:21]", 116)):
            A(f"""
            global_load_dwordx4 v[{r}:{r+3}], v13, {p}
            global_load_dwordx4 v[{r+4}:{r+7}], v15, {p}
            global_load_dword v{r+8}, v14, {p}
            """)
        A("global_load_ushort v94, v93, s[4:5]\nglobal_load_ushort v95, v95, s[22:23]")
        self.read_tag(4)
        A(f"""
        s_mul_i32 s44, s58, 1152
        s_add_u32 s44, s44, {XN}
        v_lshlrev_b32 v14, 1, v0
        v_add_u32 v11, s44, v1
        v_add_u32 v12, s44, v14
        ds_read_b128 v[16:19], v11
        ds_read_u16 v20, v12 offset:1024
        s_waitcnt lgkmcnt(0)
        """)
        self.unpack9(16, 20)
        A("s_call_b64 s[50:51], L_ln")
        A(f"""
        v_lshlrev_b32 v11, 5, v0
        v_add_u32 v11, {HB}, v11
        v_lshlrev_b32 v12, 2, v0
        v_add_u32 v12, {HB}, v12
        ds_write_b128 v11, v[22:25]
        ds_write_b128 v11, v[26:29] offset:16
        ds_write_b32 v12, v30 offset:2048
        s_lshl_b32 s44, s59, 6
        s_add_u32 s44, s44, {HB}
        v_mov_b32 v15, s44
        s_waitcnt vmcnt(0)
        """)
        self.stamp(1)
        for (r, dst) in ((96, 32), (106, 50), (116, 68)):
            for i in range(9):
                A(f"v_lshlrev_b32 v{dst+2*i}, 16, v{r+i}\nv_and_b32 v{dst+2*i+1}, 0xffff0000, v{r+i}")
        K0 = -2.0 * math.sqrt(2.0 / math.pi) * math.log2(math.e)
        K1 = K0 * 0.044715
        A(f"""
        v_mov_b32 v30, {f2u(K0):#x}
        v_mov_b32 v31, {f2u(K1):#x}
        s_lshl_b32 s44, s34, 4
        s_add_u32 s44, s44, {GP}
        v_lshlrev_b32 v14, 2, v2
        v_add_u32 v14, s44, v14
        s_mov_b32 s47, 0
        s_mov_b32 s48, 0x00010001
        s_mov_b32 s49, 0x00010001
        s_waitcnt lgkmcnt(0)
        ds_read_b32 v4, v15
        L_mlp:
        v_mov_b32 v6, 0
        v_mov_b32 v7, 0
        s_waitcnt lgkmcnt(0)
        """)
        for grp in range(3):
            ks = [3 * grp + j for j in range(3)]
            U = lambda j: f"v[{8+2*j}:{9+2*j}]"
            T = lambda j: f"v[{16+2*j}:{17+2*j}]"
            P = lambda base, k: f"v[{base+2*k}:{base+2*k+1}]"
            for j, k in enumerate(ks): A(f"v_pk_fma_f32 {U(j)}, {P(32,k)}, v[4:5], {P(50,k)} op_sel_hi:[1,0,1]")
            for j, k in enumerate(ks): A(f"v_pk_mul_f32 {T(j)}, {U(j)}, {U(j)}")
            for j, k in enumerate(ks): A(f"v_pk_fma_f32 {T(j)}, {T(j)}, v[30:31], v[30:31] op_sel:[0,1,0] op_sel_hi:[1,1,0]")
            for j, k in enumerate(ks): A(f"v_pk_mul_f32 {T(j)}, {T(j)}, {U(j)}")
            for j, k in enumerate(ks): A(f"v_exp_f32 v{16+2*j}, v{16+2*j}\nv_exp_f32 v{17+2*j}, v{17+2*j}")
            for j, k in enumerate(ks): A(f"v_pk_mul_f32 {U(j)}, {U(j)}, {P(68,k)}")
            for j, k in enumerate(ks): A(f"v_pk_add_f32 {T(j)}, {T(j)}, 1.0 op_sel_hi:[1,0]")
            for j, k in enumerate(ks): A(f"v_rcp_f32 v{16+2*j}, v{16+2*j}\nv_rcp_f32 v{17+2*j}, v{17+2*j}")
            A("v_add_u32 v15, 4, v15\nds_read_b32 v4, v15" if grp == 2 else "s_nop 0")
            for j, k in enumerate(ks): A(f"v_pk_fma_f32 v[6:7], {U(j)}, {T(j)}, v[6:7]")
        ins = "v_add_f32_dpp v6, v6, v6"
        A(f"""
        v_add_f32 v6, v6, v7
        s_nop 1
        {ins} quad_perm:[1,0,3,2] {DPPF}
        s_nop 1
        {ins} quad_perm:[2,3,0,1] {DPPF}
        s_nop 1
        {ins} row_half_mirror {DPPF}
        s_nop 1
        {ins} row_mirror {DPPF}
        s_mov_b64 exec, s[48:49]
        ds_write_b32 v14, v6
        s_mov_b64 exec, -1
        v_add_u32 v14, 64, v14
        s_add_u32 s47, s47, 1
        s_cmp_lt_u32 s47, 16
        s_cbranch_scc1 L_mlp
        s_waitcnt lgkmcnt(0)
        """)
        self.lds_signal(F_G, 8)
        self.stamp(2)
        A(f"""
        s_cmp_lg_u32 s34, 0
        s_cbranch_scc1 L_end
        s_setprio 3
        v_lshlrev_b32 v6, 6, v92
        v_add_u32 v6, {GP}, v6
        s_lshl_b32 s44, s96, 11
        s_add_u32 s44, s44, {W_S}
        v_add_u32 v7, s44, v1
        global_load_dwordx4 v[32:35], v7, s[28:29] sc1
        global_load_dwordx4 v[36:39], v7, s[28:29] offset:1024 sc1
        """)
        self.lds_wait(F_G, 4, 8, sleep=1)
        A("""
        ds_read_b128 v[8:11], v6
        ds_read_b128 v[12:15], v6 offset:16
        ds_read_b128 v[16:19], v6 offset:32
        ds_read_b128 v[20:23], v6 offset:48
        s_waitcnt lgkmcnt(0)
        """)
        for i in range(9, 24):
            A(f"v_add_f32 v8, v8, v{i}")
        self.rb(8)
        A("v_lshlrev_b32 v4, 16, v94\nv_lshlrev_b32 v5, 16, v95\nv_add_f32 v8, v8, v5")
        self.rb(8)
        A("""
        v_mul_f32 v9, 0xbfb8aa3b, v8
        v_exp_f32 v9, v9
        s_nop 0
        v_add_f32 v9, 1.0, v9
        v_rcp_f32 v9, v9
        s_nop 0
        v_mul_f32 v5, v8, v9
        """)
        self.rb(5)
        A(f"""
        v_bfe_u32 v8, v0, 3, 2
        v_cmp_eq_u32 s[52:53], 0, v8
        s_waitcnt vmcnt(0)
        """)
        self.stamp(3)
        if self.opt("notail", 0) or self.opt("cut", 0):
            A("s_branch L_end")
        self.lds_wait(F_OB, 1, 8, sleep=1)
        self.stamp(4)
        if self.opt("mask2", 1):
            self.poll2m(7, 1024, 32, 16, "L_spoll", sleep=self.opt("ssleep", 0), pol=self.opt("spol", "sc1").replace("_", " "))
            A("v_add_f32 v10, v32, v36\nv_add_f32 v11, v34, v38")
        else:
            self.poll2(7, 1024, 32, 40, 16, "L_spoll",
                   lambda b: A(f"v_add_f32 v10, v{b}, v{b+4}\nv_add_f32 v11, v{b+2}, v{b+6}"))
        A(f"""
        s_nop 1
        v_permlane32_swap_b32 v10, v11
        v_add_f32 v10, v10, v11
        v_mov_b32 v11, v10
        s_nop 1
        v_permlane16_swap_b32 v10, v11
        v_add_f32 v10, v10, v11
        s_nop 1
        v_add_f32_dpp v10, v10, v10 row_ror:8 {DPPF}
        """)
        self.rb(10)
        A("v_mul_f32 v10, v10, v5")
        self.rb(10)
        A(f"""
        v_add_f32 v10, v10, v4
        v_cvt_pk_bf16_f32 v10, v10, v10
        s_mov_b64 exec, s[52:53]
        global_store_short v93, v10, s[24:25] {self.opt('opol', '').replace('_', ' ')}
        s_mov_b64 exec, -1
        """)
        self.stamp(5)
        A(f"""
        s_cmp_lg_u32 s96, 0
        s_cbranch_scc1 L_end
        v_mov_b32 v8, 0
        v_mov_b32 v10, s60
        v_mov_b32 v11, s61
        s_mov_b64 exec, 1
        global_store_dwordx2 v8, v[10:11], s[28:29] offset:{W_EPOCH}
        s_mov_b64 exec, -1
        """)


if __name__ == "__main__":
    import argparse
    ap = argparse.ArgumentParser()
    ap.add_argument("--out", default="recurrent_scan__sliding_block_cached__mixer_token_mlp__decode.s")
    ap.add_argument("--stamps", action="store_true")
    ap.add_argument("--opt", action="append", default=[])
    a = ap.parse_args()
    opts = dict(x.split("=", 1) for x in a.opt)
    open(a.out, "w").write(G(a.stamps, opts).gen())
```

```python
import sys, math, struct
NAME = "recurrent_scan__sliding_block_cached__mixer_token_mlp__decode_kernel"

KBUF = 0
WQ   = 131072
PB   = WQ
OPART = WQ + 4096
XN   = WQ + 18432
HB   = XN + 4608
QS   = HB + 2304
GP   = QS + 512
INIT = GP + 1024
(F_X, F_Q, F_K, F_M, F_P, F_WO, F_O, F_OB, F_G, F_T, F_WQ, F_QP, F_F, F_S, F_VI) = [INIT + 4 * i for i in range(15)]
TAG  = INIT + 64
FB   = INIT + 128
MA   = INIT + 96
LA   = INIT + 192
OB   = INIT + 512
LDS_BYTES = INIT + 1024
assert LDS_BYTES <= 163840, LDS_BYTES
WO8 = 65536
W_EPOCH = 0
W_Q  = 0x1000
W_ML = 0x90000
W_O  = 0xA0000
W_S  = 0x140000
W_G  = 0x94000
STAMP_OFF = 0x10000000
LIMIT = 0x2000000
f2u = lambda f: struct.unpack("<I", struct.pack("<f", f))[0]
DPPF = "row_mask:0xf bank_mask:0xf"


DOC = '''
; ---------------------------------------------------------------------------------------------
; owns keys [512s, 512s+512) of the 2048-key window of (b, kvh) for both query heads of that kv head.
; Hand-offs between workgroups go through d_ws as 16-byte granules {data, tagL, data, tagH}; the 64-bit tag
; is (epoch word found in d_ws on entry) + constant, and the new epoch is stored at the end of the launch.
; ---------------------------------------------------------------------------------------------
'''


class G:
    def __init__(self, stamps=False, opts=None):
        self.L = []
        self.stamps = stamps
        self.o = opts or {}
        self.uid = 0

    def opt(self, k, d):
        v = self.o.get(k, d)
        return type(d)(v) if not isinstance(d, str) else v

    def A(self, s):
        for line in s.strip("\n").split("\n"):
            t = line.strip()
            if not t:
                continue
            self.L.append(t if t.endswith(":") else "  " + t)

    def lab(self, p="L"):
        self.uid += 1
        return f"{p}_{self.uid}"

    def stamp(self, i):
        if self.stamps:
            self.A(f"s_memrealtime s[{64+2*i}:{65+2*i}]\ns_waitcnt lgkmcnt(0)")

    def guard(self, inc):
        inc = 1 if inc == 1 else 4
        self.A(f"s_add_u32 s62, s62, {inc}\ns_cmp_gt_u32 s62, {LIMIT:#x}\ns_cbranch_scc1 L_end")

    def lds_wait(self, addr, val, vt, sleep=0):
        l = self.lab("LW")
        self.A(f"v_mov_b32 v{vt}, {addr}\n{l}:\nds_read_b32 v{vt+1}, v{vt}")
        self.guard(1)
        if sleep:
            self.A(f"s_sleep {sleep}")
        self.A(f"""
        s_waitcnt lgkmcnt(0)
        v_readfirstlane_b32 s46, v{vt+1}
        s_nop 0
        s_cmp_lt_u32 s46, {val}
        s_cbranch_scc1 {l}
        """)

    def lds_signal(self, addr, vt, rtn=False):
        self.A(f"v_mov_b32 v{vt}, {addr}\nv_mov_b32 v{vt+1}, 1\ns_mov_b64 exec, 1")
        self.A(f"ds_add_rtn_u32 v{vt+1}, v{vt}, v{vt+1}" if rtn else f"ds_add_u32 v{vt}, v{vt+1}")
        self.A("s_mov_b64 exec, -1")

    def wave_sum(self, v, s):
        ins = f"v_add_f32_dpp v{v}, v{v}, v{v}"
        self.A(f"""
        s_nop 1
        {ins} quad_perm:[1,0,3,2] {DPPF}
        s_nop 1
        {ins} quad_perm:[2,3,0,1] {DPPF}
        s_nop 1
        {ins} row_half_mirror {DPPF}
        s_nop 1
        {ins} row_mirror {DPPF}
        s_nop 1
        {ins} row_bcast:15 row_mask:0xa bank_mask:0xf
        s_nop 1
        {ins} row_bcast:31 row_mask:0xc bank_mask:0xf
        s_nop 0
        v_readlane_b32 s{s}, v{v}, 63
        s_nop 1
        """)

    def rb(self, v):
        self.A(f"v_cvt_pk_bf16_f32 v{v}, v{v}, v{v}\nv_and_b32 v{v}, 0xffff0000, v{v}")

    def rb2(self, a, b):
        self.A(f"v_cvt_pk_bf16_f32 v{b}, v{a}, v{b}\nv_lshlrev_b32 v{a}, 16, v{b}\nv_and_b32 v{b}, 0xffff0000, v{b}")

    def read_tag(self, vt):
        self.A(f"""
        v_mov_b32 v{vt}, {TAG}
        ds_read_b64 v[{vt}:{vt+1}], v{vt}
        s_waitcnt lgkmcnt(0)
        v_readfirstlane_b32 s60, v{vt}
        v_readfirstlane_b32 s61, v{vt+1}
        s_nop 1
        """)

    def xlane45(self, v, t, op):
        self.A(f"""
        v_mov_b32 v{t}, v{v}
        s_nop 1
        v_permlane32_swap_b32 v{v}, v{t}
        v_{op}_f32 v{v}, v{v}, v{t}
        v_mov_b32 v{t}, v{v}
        s_nop 1
        v_permlane16_swap_b32 v{v}, v{t}
        v_{op}_f32 v{v}, v{v}, v{t}
        """)

    def tagchk(self, sets, acc, t):
        first = True
        for b in sets:
            if first:
                self.A(f"v_xor_b32 v{acc}, s60, v{b+1}\nv_xor_b32 v{t}, s61, v{b+3}\nv_or_b32 v{acc}, v{acc}, v{t}")
                first = False
            else:
                self.A(f"v_xor_b32 v{t}, s60, v{b+1}\nv_xor_b32 v{t+1}, s61, v{b+3}\nv_or3_b32 v{acc}, v{acc}, v{t}, v{t+1}")
        self.A(f"v_cmp_ne_u32 vcc, 0, v{acc}")

    def poll2(self, vaddr, off2, A0, B0, acc, name, consume, pre=None):
        A = self.A
        ld = lambda r: (f"global_load_dwordx4 v[{r}:{r+3}], v{vaddr}, s[28:29] sc1\n"
                        f"global_load_dwordx4 v[{r+4}:{r+7}], v{vaddr}, s[28:29] offset:{off2} sc1")
        A(ld(A0))
        if pre: pre()
        A(f"{name}:\n" + ld(B0))
        self.guard(64)
        A("s_waitcnt vmcnt(2)")
        self.tagchk([A0, A0 + 4], acc, acc + 1)
        A(f"s_cbranch_vccz {name}_a\n" + ld(A0) + "\ns_waitcnt vmcnt(2)")
        self.tagchk([B0, B0 + 4], acc, acc + 1)
        A(f"s_cbranch_vccnz {name}")
        consume(B0)
        A(f"s_branch {name}_ok\n{name}_a:")
        consume(A0)
        A(f"{name}_ok:")

    def poll2m(self, vaddr, off2, A0, acc, name, pre=None, sleep=0, pol="sc1"):
        A = self.A
        ld = (f"global_load_dwordx4 v[{A0}:{A0+3}], v{vaddr}, s[28:29] {pol}\n"
              f"global_load_dwordx4 v[{A0+4}:{A0+7}], v{vaddr}, s[28:29] offset:{off2} {pol}")
        A(ld)
        if pre: pre()
        A(f"{name}:")
        if sleep: A(f"s_sleep {sleep}")
        A(ld)
        self.guard(64)
        A("s_waitcnt vmcnt(2)")
        self.tagchk([A0, A0 + 4], acc, acc + 1)
        A(f"s_mov_b64 exec, vcc\ns_cbranch_vccnz {name}\ns_mov_b64 exec, -1")

    def frag_reads(self):
        A = self.A
        for d in range(3):
            A(f"v_mov_b32 v4, v{51+d}")
            for k in range(2):
                r = 96 + (d * 2 + k) * 4
                A(f"""
                ds_read_b64_tr_b16 v[{r}:{r+1}], v4
                v_add_u32 v4, s{57+d}, v4
                ds_read_b64_tr_b16 v[{r+2}:{r+3}], v4
                """)
                if k == 0:
                    A(f"v_add_u32 v4, s{57+d}, v4")
        A(f"""
        v_mov_b32 v61, s60
        v_mov_b32 v63, s61
        v_mov_b32 v4, {F_OB}
        v_cndmask_b32 v61, v61, v63, s[54:55]
        """)

    def gen(self):
        A = self.A
        for line in open("recurrent_scan__sliding_block_cached__mixer_token_mlp__decode.s.ref").read().split("\n"):
            if line.startswith("; @launch"):
                self.L.append(f"; @launch grid=(256,1,1) block=(1024,1,1) lds={LDS_BYTES}")
                break
            self.L.append(line)
        self.L += DOC.strip("\n").split("\n")
        self.L += ['.amdgcn_target "amdgcn-amd-amdhsa--gfx950"', ".text", f".globl {NAME}", ".p2align 8",
                   f".type {NAME},@function", f"{NAME}:"]
        if self.opt("amp", 0):
            A("s_memrealtime s[64:65]")
        if self.stamps:
            A("s_memrealtime s[64:65]")
            for i in range(66, 96):
                A(f"s_mov_b32 s{i}, 0")
        cons = [1, 2, 4, 6, 8, 9, 12, 13, 14] if self.opt("cmap", 2) == 2 else [1, 2, 3, 4, 6, 7, 8, 9, 11]
        LUT = 0
        for u in range(16):
            nib = cons.index(u) if u in cons else (15 if u % 5 == 0 else 14)
            LUT |= nib << (4 * u)
        A(f"""
        s_cmp_ge_u32 s2, 256
        s_cbranch_scc1 L_exit
        s_load_dwordx16 s[4:19], s[0:1], 0
        s_load_dwordx8 s[20:27], s[0:1], 64
        s_load_dwordx2 s[28:29], s[0:1], 96
        v_lshrrev_b32 v1, 6, v0
        v_and_b32 v0, 63, v0
        v_readfirstlane_b32 s3, v1
        s_and_b32 s30, s2, 15
        s_lshr_b32 s31, s2, 4
        {'s_xor_b32 s3, s3, 8' if self.opt('sfirst', 0) else ''}
        s_lshr_b32 s32, s31, 2
        s_and_b32 s33, s31, 3
        s_lshl_b32 s35, s32, 4
        s_add_u32 s35, s35, s30
        s_mov_b32 s96, {LUT & 0xffffffff:#x}
        s_mov_b32 s97, {LUT >> 32:#x}
        s_lshl_b32 s44, s31, 2
        s_lshr_b64 s[96:97], s[96:97], s44
        s_and_b32 s96, s96, 15
        s_lshl_b32 s96, s96, 4
        s_add_u32 s96, s96, s30
        s_mov_b32 s62, 0
        s_mov_b32 s39, 0x20000
        s_mov_b32 s43, 0x20000
        v_lshlrev_b32 v1, 4, v0
        v_lshrrev_b32 v2, 4, v0
        s_cmp_lt_u32 s3, 8
        s_cbranch_scc0 L_S
        s_cmp_lt_u32 s3, 4
        s_cbranch_scc0 L_M
        """)
        A(f"""
        s_setprio {self.opt('prioA', 3)}
        s_mul_i32 s44, s3, 1152
        s_movk_i32 s38, 1152
        v_lshlrev_b32 v14, 1, v0
        s_cmp_lg_u32 s3, 0
        s_cbranch_scc1 L_noinit
        v_mov_b32 v4, 0
        v_mov_b32 v5, 0
        v_mov_b32 v6, 0
        v_mov_b32 v7, 0
        v_add_u32 v3, {INIT}, v1
        ds_write_b128 v3, v[4:7]
        L_noinit:
        s_waitcnt lgkmcnt(0)
        s_add_u32 s36, s4, s44
        s_addc_u32 s37, s5, 0
        buffer_load_dwordx4 v[16:19], v1, s[36:39], 0 offen
        buffer_load_ushort v20, v14, s[36:39], 0 offen offset:1024
        s_load_dwordx2 s[60:61], s[28:29], {W_EPOCH}
        s_barrier
        s_branch L_A
        """)
        A(f"""
        L_M:
        s_setprio {self.opt('prioM', 2)}
        s_sub_u32 s34, s3, 4
        s_lshr_b32 s46, s2, 3
        s_waitcnt lgkmcnt(0)
        s_cmp_lg_u32 s34, 3
        s_cbranch_scc1 L_nowarmc
        s_cmp_lt_u32 s46, (L_code_end-{NAME})>>10
        s_cbranch_scc0 L_nowarmc
        s_getpc_b64 s[44:45]
        L_pc:
        s_sub_u32 s44, s44, L_pc-{NAME}
        s_subb_u32 s45, s45, 0
        s_lshl_b32 s46, s46, 10
        v_add_u32 v3, s46, v1
        global_load_dwordx4 v[88:91], v3, s[44:45]
        L_nowarmc:
        s_cmp_lg_u32 s34, 2
        s_cbranch_scc1 L_nowarmw
        s_cmp_lt_u32 s46, 27
        s_cbranch_scc0 L_nowarmw
        s_mov_b64 s[44:45], s[16:17]
        s_cmp_lt_u32 s46, 9
        s_cbranch_scc1 L_warmw
        s_mov_b64 s[44:45], s[18:19]
        s_sub_u32 s46, s46, 9
        s_cmp_lt_u32 s46, 9
        s_cbranch_scc1 L_warmw
        s_mov_b64 s[44:45], s[20:21]
        s_sub_u32 s46, s46, 9
        L_warmw:
        s_lshl_b32 s46, s46, 10
        v_add_u32 v3, s46, v1
        global_load_dwordx4 v[88:91], v3, s[44:45]
        L_nowarmw:
        s_barrier
        s_cmp_lt_u32 s96, {0 if self.opt('nom', 0) else 144}
        s_cbranch_scc0 L_end
        s_branch L_M2
        """)
        A("L_S:")
        self.gen_S()
        self.gen_proj()
        self.gen_A()
        self.gen_LN()
        self.gen_M()
        A("L_end:")
        if self.stamps:
            A(f"""
            s_mov_b64 exec, -1
            s_waitcnt lgkmcnt(0)
            s_memrealtime s[94:95]
            s_lshl_b32 s44, s2, 4
            s_add_u32 s44, s44, s3
            s_lshl_b32 s44, s44, 7
            s_add_u32 s44, s44, {STAMP_OFF}
            s_add_u32 s28, s28, s44
            s_addc_u32 s29, s29, 0
            s_waitcnt vmcnt(0) lgkmcnt(0)
            """)
            for i in range(32):
                A(f"v_writelane_b32 v6, s{64+i}, {i}")
            A("""
            v_lshlrev_b32 v4, 2, v0
            s_mov_b32 exec_hi, 0
            global_store_dword v4, v6, s[28:29]
            """)
        A("L_exit:")
        A("s_endpgm")
        A("L_code_end:")
        self.L += ['.section .rodata,"a"', ".p2align 6", f".amdhsa_kernel {NAME}",
                   "  .amdhsa_next_free_vgpr 128", "  .amdhsa_next_free_sgpr 100", "  .amdhsa_accum_offset 128",
                   "  .amdhsa_group_segment_fixed_size 0", "  .amdhsa_kernarg_size 104", "  .amdhsa_user_sgpr_count 2",
                   "  .amdhsa_user_sgpr_kernarg_segment_ptr 1", "  .amdhsa_system_sgpr_workgroup_id_x 1",
                   ".end_amdhsa_kernel"]
        kp = self.opt("kvpol", "nt")
        if kp != "nt":
            self.L = [l.replace("offen nt", "offen " + kp.replace("_", " ").replace("def", "")) for l in self.L]
        return "\n".join(self.L) + "\n"

    def gen_S(self):
        A = self.A
        D = self.opt("depth", 4)
        IL = self.opt("ilv", 0)
        A(f"""
        s_setprio {self.opt('prioS', 1)}
        s_sub_u32 s34, s3, 8
        s_mul_i32 s44, s32, {144*8192}
        s_lshl_b32 s45, s30, 9
        s_add_u32 s44, s44, s45
        s_lshl_b32 s45, s33, 7
        s_add_u32 s44, s44, s45
        s_mov_b32 s42, {143*8192+128}
        v_lshrrev_b32 v4, 3, v0
        v_bfe_u32 v3, v0, 4, 2
        v_lshlrev_b32 v3, 1, v3
        v_and_b32 v5, 7, v0
        v_xor_b32 v3, v3, v5
        v_lshlrev_b32 v3, 4, v3
        v_lshl_add_u32 v4, v4, 13, v3
        s_lshl_b32 s45, s34, 10
        s_add_u32 m0, s45, {WQ}
        s_lshl_b32 s45, s34, 16
        s_lshl_b32 s46, s35, 21
        s_lshl_b32 s47, s33, {14 if IL else 17}
        s_add_u32 s46, s46, s47
        s_add_u32 s46, s46, {6144*256}
        s_mov_b32 s38, {0x74000 if IL else 0x20000}
        s_lshl_b32 s47, s34, {16 if IL else 14}
        s_add_u32 s47, s47, s46
        s_mul_i32 s51, s2, 5
        s_add_u32 s51, s51, s31
        v_lshlrev_b32 v3, 6, v2
        v_xor_b32 v3, v1, v3
        v_mov_b32 v5, {F_T}
        v_mov_b32 v6, 1
        s_mov_b32 s50, s34
        s_waitcnt lgkmcnt(0)
        s_add_u32 s40, s10, s44
        s_addc_u32 s41, s11, 0
        s_add_u32 s36, s6, s46
        s_addc_u32 s37, s7, 0
        L_wqloop:
        buffer_load_dwordx4 v4, s[40:43], s45 offen nt lds
        s_add_u32 m0, m0, 0x2000
        s_add_u32 s45, s45, 0x80000
        s_cmp_lt_u32 s45, {18*65536}
        s_cbranch_scc1 L_wqloop
        s_add_u32 s40, s8, s47
        s_addc_u32 s41, s9, 0
        s_movk_i32 s42, 0x4000
        """)
        self.stamp(1)
        A(f"""
        L_kloop:
        s_and_b32 s44, s50, 7
        s_lshr_b32 s45, s50, 3
        s_mul_i32 s46, s44, 3
        s_add_u32 s46, s46, s51
        s_add_u32 s46, s46, s45
        s_and_b32 s46, s46, 15
        {'s_lshl_b32 s48, s44, 6' if IL else ''}
        s_lshl_b32 s44, s44, 4
        s_add_u32 s46, s46, {'s48' if IL else 's44'}
        s_lshl_b32 s46, s46, 10
        s_add_u32 s44, s44, s45
        s_lshl_b32 m0, s44, 10
        s_and_b32 s47, s45, 3
        s_lshl_b32 s47, s47, 4
        v_xor_b32 v4, s47, v3
        s_waitcnt vmcnt({D-1})
        buffer_load_dwordx4 v4, s[36:39], s46 offen nt lds
        s_cmp_lt_u32 s50, 8
        s_cbranch_scc0 L_knobar
        s_barrier
        L_knobar:
        s_cmp_lt_u32 s50, {8*(D-2)}
        s_cbranch_scc0 L_kdyn
        s_add_u32 s50, s50, 8
        s_branch L_kloop
        L_kdyn:
        s_cmp_lt_u32 s50, {8*(D-1)}
        s_cbranch_scc0 L_kdyn2
        s_add_u32 s50, s50, 8
        s_mov_b64 exec, 1
        ds_add_rtn_u32 v7, v5, v6
        s_mov_b64 exec, -1
        s_branch L_kloop
        L_kdyn2:
        s_waitcnt lgkmcnt(0)
        v_readfirstlane_b32 s49, v7
        s_mov_b64 exec, 1
        ds_add_rtn_u32 v7, v5, v6
        s_cmp_lt_u32 s50, {8*D}
        s_cbranch_scc0 L_knosig
        ds_add_u32 v5, v6 offset:{F_WQ-F_T}
        L_knosig:
        s_mov_b64 exec, -1
        s_add_u32 s50, s49, {8*D}
        s_cmp_lt_u32 s50, 128
        s_cbranch_scc1 L_kloop
        s_mul_i32 s46, s34, 3
        s_add_u32 s46, s46, s51
        s_and_b32 s46, s46, 15
        s_lshl_b32 s46, s46, 10
        s_movk_i32 s48, 0x400
        s_movk_i32 s49, 0x3fff
        s_waitcnt lgkmcnt(0)
        """)
        self.stamp(2)
        VB = 64
        DV = self.opt("depthv", D)
        def vload(n):
            A(f"""
            buffer_load_dwordx4 v[{VB+4*n}:{VB+4*n+3}], v1, s[40:43], s46 offen nt
            s_add_u32 s46, s46, s48
            s_and_b32 s46, s46, s49
            """)
        for n in range(D):
            A(f"s_waitcnt vmcnt({D-1})")
            if n == D - 1:
                self.lds_signal(F_K, 4)
            vload(n)
        self.S_setup()
        cls = [("light", self.opt("pl", 3), self.opt("nl", 14)), ("mlp", self.opt("pm", 6), self.opt("nm", 12)), ("own", self.opt("po", 0), self.opt("no", 12))]
        A("""
        s_cmp_ge_u32 s96, 240
        s_cbranch_scc1 L_v_own
        s_cmp_lt_u32 s96, 144
        s_cbranch_scc1 L_v_mlp
        """)
        for name, p, lim in cls:
            A(f"L_v_{name}:")
            for n in range(D, 16):
                if p and n < lim:
                    A(f"s_waitcnt vmcnt({p-1})")
                vload(n)
            if name != "own":
                A("s_branch L_v_done")
        A("L_v_done:")
        if self.opt("wolast", 0):
            self.lds_signal(F_VI, 4)
        self.stamp(3)
        self.lds_wait(F_P, 4, 4, sleep=1)
        self.stamp(4)
        A(f"""
        s_setprio 3
        ds_read_b128 v[16:19], v12
        ds_read_b128 v[20:23], v12 offset:16
        ds_read_b128 v[24:27], v12 offset:32
        ds_read_b128 v[28:31], v12 offset:48
        """)
        self.read_tag(4)
        A(f"""
        v_mov_b32 v41, s60
        v_mov_b32 v43, s61
        v_mov_b32 v45, s60
        v_mov_b32 v47, s61
        """)
        for n in range(16):
            a = 36 if n % 2 == 0 else 4
            A(f"""
            v_and_b32 v{a}, v{16+n}, v8
            v_and_b32 v{a+1}, v{16+n}, v9
            v_and_b32 v{a+2}, v{16+n}, v10
            v_and_b32 v{a+3}, v{16+n}, v11
            s_waitcnt vmcnt({15-n})
            s_nop 0
            v_mfma_f32_16x16x32_bf16 v[32:35], v[{a}:{a+3}], v[{VB+4*n}:{VB+4*n+3}], v[32:35]
            """)
        self.stamp(9)
        A(f"""
        v_mov_b32 v8, {F_O}
        v_mov_b32 v9, 1
        s_nop 5
        ds_write_b128 v15, v[32:35]
        s_mov_b64 exec, 1
        ds_add_rtn_u32 v9, v8, v9
        s_mov_b64 exec, -1
        ds_read_b32 v10, v8 offset:{F_F-F_O}
        ds_read_b128 v[36:39], v59
        """)
        for i in range(8):
            A(f"ds_read_b128 v[{64+4*i}:{67+4*i}], v14 offset:{1024*i}")
        A("""
        s_waitcnt lgkmcnt(9)
        v_readfirstlane_b32 s47, v9
        v_readfirstlane_b32 s46, v10
        s_nop 0
        s_cmp_lg_u32 s47, 7
        s_cbranch_scc1 L_S_notlast
        """)
        if self.opt("notail", 0): A("s_branch L_end")
        ld = "\n".join(f"global_load_dwordx4 v[{96+4*i}:{99+4*i}], v{48+i}, s[28:29] sc1" for i in range(3))
        A(ld)
        for i in range(0, 8, 2):
            A(f"""
            s_waitcnt lgkmcnt({6-i})
            v_pk_add_f32 v[{64+4*i}:{65+4*i}], v[{64+4*i}:{65+4*i}], v[{68+4*i}:{69+4*i}]
            v_pk_add_f32 v[{66+4*i}:{67+4*i}], v[{66+4*i}:{67+4*i}], v[{70+4*i}:{71+4*i}]
            """)
            if i in (2, 6):
                b = 64 + 4 * (i - 2)
                A(f"""
                v_pk_add_f32 v[{b}:{b+1}], v[{b}:{b+1}], v[{b+8}:{b+9}]
                v_pk_add_f32 v[{b+2}:{b+3}], v[{b+2}:{b+3}], v[{b+10}:{b+11}]
                """)
        A(f"""
        v_pk_add_f32 v[64:65], v[64:65], v[80:81]
        v_pk_add_f32 v[66:67], v[66:67], v[82:83]
        s_cmp_eq_u32 s46, {2 if self.opt('local', 1) else 99}
        v_cvt_pk_bf16_f32 v40, v64, v65
        v_cvt_pk_bf16_f32 v42, v66, v67
        s_cbranch_scc1 L_opub_local
        global_store_dwordx4 v13, v[40:43], s[28:29] sc1
        s_branch L_opub_done
        L_opub_local:
        global_store_dwordx4 v13, v[40:43], s[28:29]
        L_opub_done:
        """)
        self.stamp(5)
        A("s_cmp_lg_u32 s46, 0\ns_cbranch_scc1 L_fok")
        self.lds_wait(F_F, 1, 10)
        A(f"""
        ds_read_b128 v[36:39], v59
        s_waitcnt lgkmcnt(0)
        L_fok:
        v_mul_f32 v64, v64, v36
        v_mul_f32 v65, v65, v36
        v_mul_f32 v66, v66, v36
        v_mul_f32 v67, v67, v36
        v_mov_b32 v9, 1
        L_opoll:
        """)
        A(ld)
        self.guard(64)
        A("s_waitcnt vmcnt(3)")
        self.tagchk([96 + 4 * i for i in range(3)], 16, 17)
        A("s_cbranch_vccnz L_opoll")
        for i in range(3):
            A(f"""
            v_lshlrev_b32 v16, 16, v{96+4*i}
            v_and_b32 v17, 0xffff0000, v{96+4*i}
            v_lshlrev_b32 v18, 16, v{98+4*i}
            v_and_b32 v19, 0xffff0000, v{98+4*i}
            v_fmac_f32 v64, v16, v{37+i}
            v_fmac_f32 v65, v17, v{37+i}
            v_fmac_f32 v66, v18, v{37+i}
            v_fmac_f32 v67, v19, v{37+i}
            """)
        A(f"""
        v_cvt_pk_bf16_f32 v64, v64, v65
        v_cvt_pk_bf16_f32 v65, v66, v67
        ds_write_b64 v58, v[64:65]
        s_mov_b64 exec, 1
        ds_write_b32 v8, v9 offset:{F_OB-F_O}
        s_mov_b64 exec, -1
        """)
        self.stamp(12)
        A(f"""
        s_branch L_end
        L_S_notlast:
        s_cmp_lt_u32 s47, 4
        s_cbranch_scc0 L_end
        s_add_u32 s56, s47, 4
        s_mov_b32 s57, 0
        """)

    def S_setup(self):
        A = self.A
        A(f"""
        v_and_b32 v4, 1, v0
        v_cmp_eq_u32 vcc, 1, v4
        v_mov_b32 v5, 0xffff
        v_mov_b32 v6, 0xffff0000
        v_bfe_u32 v4, v0, 1, 2
        v_cndmask_b32 v5, v5, v6, vcc
        """)
        for i in range(4):
            A(f"v_cmp_eq_u32 vcc, {i}, v4\ns_nop 1\nv_cndmask_b32 v{8+i}, 0, v5, vcc")
        A(f"""
        v_bfe_u32 v4, v0, 3, 1
        v_lshlrev_b32 v4, 11, v4
        v_lshl_add_u32 v4, v2, 6, v4
        s_lshl_b32 s44, s34, 8
        s_add_u32 s44, s44, {PB}
        v_add_u32 v12, s44, v4
        v_mov_b32 v32, 0
        v_mov_b32 v33, 0
        v_mov_b32 v34, 0
        v_mov_b32 v35, 0
        v_and_b32 v5, 15, v0
        s_lshl_b32 s44, s35, 12
        s_add_u32 s44, s44, {W_O}
        s_lshl_b32 s45, s33, 10
        s_add_u32 s47, s45, s44
        v_add_u32 v13, s47, v1
        """)
        for i in range(3):
            A(f"""
            s_add_u32 s45, s45, 0x400
            s_and_b32 s45, s45, 0xfff
            s_add_u32 s47, s45, s44
            v_add_u32 v{48+i}, s47, v1
            """)
        A(f"""
        v_add_u32 v14, {OPART}, v1
        v_lshrrev_b32 v4, 5, v0
        v_lshlrev_b32 v59, 4, v4
        v_add_u32 v59, {FB}, v59
        v_lshlrev_b32 v4, 9, v4
        v_lshl_add_u32 v4, v5, 5, v4
        v_bfe_u32 v5, v0, 4, 1
        v_lshl_add_u32 v4, v5, 4, v4
        s_lshl_b32 s44, s34, 10
        s_add_u32 s44, s44, {OPART}
        v_add_u32 v15, s44, v4
        v_lshrrev_b32 v6, 3, v0
        v_lshlrev_b32 v6, 6, v6
        v_and_b32 v7, 3, v0
        v_lshl_add_u32 v6, v7, 4, v6
        v_bfe_u32 v7, v0, 2, 1
        v_lshl_add_u32 v6, v7, 3, v6
        v_add_u32 v58, {OB}, v6
        """)

    def gen_proj(self):
        A = self.A
        A("L_proj:")
        if self.opt("notail", 0):
            A("s_branch L_end")
        A(f"""
        s_setprio 0
        v_bfe_u32 v5, v0, 2, 2
        v_lshl_add_u32 v6, v2, 2, v5
        v_and_b32 v7, 3, v0
        v_lshlrev_b32 v7, 3, v7
        v_and_b32 v8, 7, v6
        v_xor_b32 v8, s56, v8
        v_lshl_add_u32 v8, v8, 5, v7
        v_lshl_add_u32 v50, v6, 8, v8
        v_bfe_u32 v8, v6, 1, 2
        v_xor_b32 v8, s3, v8
        v_and_b32 v8, 3, v8
        v_lshl_add_u32 v8, v8, 5, v7
        v_lshl_add_u32 v51, v6, 7, v8
        v_add_u32 v51, {WO8}, v51
        v_lshlrev_b32 v48, 4, v2
        v_add_u32 v48, {OB}, v48
        s_mul_i32 s44, s32, 36
        s_lshl_b32 s45, s33, 3
        s_add_u32 s45, s45, s56
        s_add_u32 s45, s45, s44
        s_lshl_b32 s45, s45, 11
        s_add_u32 s44, s44, s3
        s_add_u32 s44, s44, 32
        s_lshl_b32 s44, s44, 11
        v_mov_b32 v6, s45
        v_mov_b32 v7, s44
        v_cmp_eq_u32 s[54:55], 1, v2
        v_and_b32 v8, 1, v0
        v_cmp_eq_u32 vcc, 1, v8
        v_cndmask_b32 v6, v6, v7, s[54:55]
        v_mov_b32 v61, s60
        v_mov_b32 v63, s61
        v_cndmask_b32 v61, v61, v63, vcc
        s_lshl_b32 s44, s30, 7
        s_add_u32 s44, s44, {W_S}
        v_and_b32 v7, 15, v0
        v_lshl_add_u32 v6, v7, 3, v6
        v_add_u32 v54, s44, v6
        """)
        self.lds_wait(F_WO, 4, 4, sleep=1)
        self.stamp(6)
        for k in range(8):
            if k == 4: A("s_waitcnt lgkmcnt(4)")
            A(f"ds_read_b64_tr_b16 v[{64+4*k}:{65+4*k}], v50 offset:{8192*k}")
            A(f"ds_read_b64_tr_b16 v[{66+4*k}:{67+4*k}], v50 offset:{8192*k+4096}")
        A("s_cmp_eq_u32 s57, 0\ns_cbranch_scc1 L_no8a\ns_waitcnt lgkmcnt(0)")
        for k in range(8):
            if k == 4: A("s_waitcnt lgkmcnt(4)")
            A(f"ds_read_b64_tr_b16 v[{96+4*k}:{97+4*k}], v51 offset:{4096*k}")
            A(f"ds_read_b64_tr_b16 v[{98+4*k}:{99+4*k}], v51 offset:{4096*k+2048}")
        A("L_no8a:\ns_waitcnt lgkmcnt(0)")
        self.lds_wait(F_O, 8, 6, sleep=1)
        A(f"""
        v_mov_b32 v4, {F_OB}
        L_obwait:
        ds_read_b32 v5, v4
        ds_read_b128 v[16:19], v48
        ds_read_b128 v[20:23], v48 offset:64
        """)
        self.guard(1)
        A("""
        s_waitcnt lgkmcnt(2)
        v_readfirstlane_b32 s46, v5
        s_nop 0
        s_cmp_eq_u32 s46, 0
        s_cbranch_scc1 L_obwait
        """)
        for k in range(2, 8):
            A(f"ds_read_b128 v[{16+4*k}:{19+4*k}], v48 offset:{64*k}")
        A("s_cmp_eq_u32 s57, 0\ns_cbranch_scc0 L_proj2")
        for k in range(8):
            A(f"s_waitcnt lgkmcnt({min(6, 7-k)})")
            c = "0" if k == 0 else "v[8:11]"
            A(f"v_mfma_f32_16x16x32_bf16 v[8:11], v[{16+4*k}:{19+4*k}], v[{64+4*k}:{67+4*k}], {c}")
        A("""
        s_mov_b64 exec, 0xffff
        s_nop 6
        v_mov_b32 v60, v8
        global_store_dwordx2 v54, v[60:61], s[28:29] sc1
        s_mov_b64 exec, -1
        """)
        self.stamp(8)
        A("s_branch L_end\nL_proj2:")
        for k in range(8):
            A(f"s_waitcnt lgkmcnt({min(6, 7-k)})")
            c = "0" if k == 0 else "v[8:11]"
            c2 = "0" if k == 0 else "v[12:15]"
            A(f"v_mfma_f32_16x16x32_bf16 v[8:11], v[{16+4*k}:{19+4*k}], v[{64+4*k}:{67+4*k}], {c}")
            A(f"v_mfma_f32_16x16x32_bf16 v[12:15], v[{16+4*k}:{19+4*k}], v[{96+4*k}:{99+4*k}], {c2}")
        A("""
        s_mov_b32 exec_hi, 0
        s_nop 6
        v_cndmask_b32 v60, v8, v12, s[54:55]
        global_store_dwordx2 v54, v[60:61], s[28:29] sc1
        s_mov_b64 exec, -1
        """)
        self.stamp(8)
        A("s_branch L_end")

    def gen_LN(self):
        A = self.A
        A("L_ln:")
        A("""
        v_add_f32 v31, v22, v23
        v_add_f32 v32, v24, v25
        v_add_f32 v33, v26, v27
        v_add_f32 v31, v31, v32
        v_add_f32 v32, v28, v29
        v_add_f32 v33, v33, v30
        v_add_f32 v31, v31, v32
        v_add_f32 v31, v31, v33
        """)
        self.wave_sum(31, 44)
        A("v_mov_b32 v31, 0x3ae38e39\nv_mul_f32 v31, s44, v31\nv_mov_b32 v32, 0")
        for i in range(22, 31):
            A(f"v_sub_f32 v33, v{i}, v31\nv_fmac_f32 v32, v33, v33")
        self.wave_sum(32, 45)
        self.rb(31)
        A("v_mov_b32 v32, 0x3ae38e39\nv_mul_f32 v32, s45, v32")
        self.rb(32)
        A("v_add_f32 v32, 0x3727c5ac, v32")
        self.rb(32)
        A("v_sqrt_f32 v32, v32\ns_nop 0")
        self.rb(32)
        A("v_rcp_f32 v32, v32")
        for i in range(22, 31):
            A(f"v_sub_f32 v{i}, v{i}, v31")
        for i in range(22, 30, 2):
            self.rb2(i, i + 1)
        self.rb(30)
        for i in range(22, 31):
            A(f"v_mul_f32 v{i}, v{i}, v32")
        for i in range(22, 30, 2):
            self.rb2(i, i + 1)
        self.rb(30)
        A("s_setpc_b64 s[50:51]")

    def unpack9(self, src, s9):
        for i in range(4):
            self.A(f"v_lshlrev_b32 v{22+2*i}, 16, v{src+i}\nv_and_b32 v{23+2*i}, 0xffff0000, v{src+i}")
        self.A(f"v_lshlrev_b32 v30, 16, v{s9}")

    def gen_A(self):
        A = self.A
        A(f"""
        L_A:
        s_add_u32 s44, s44, {XN}
        v_add_u32 v11, s44, v1
        v_add_u32 v12, s44, v14
        s_waitcnt vmcnt(0)
        """)
        self.stamp(1)
        self.unpack9(16, 20)
        A("s_call_b64 s[50:51], L_ln")
        A(f"""
        v_cvt_pk_bf16_f32 v16, v22, v23
        v_cvt_pk_bf16_f32 v17, v24, v25
        v_cvt_pk_bf16_f32 v18, v26, v27
        v_cvt_pk_bf16_f32 v19, v28, v29
        v_lshrrev_b32 v20, 16, v30
        ds_write_b128 v11, v[16:19]
        ds_write_b16 v12, v20 offset:1024
        s_waitcnt lgkmcnt(0)
        s_add_u32 s60, s60, 0x7f4a7c15
        s_addc_u32 s61, s61, 0x9e3779b9
        s_cmp_lg_u32 s3, 0
        s_cbranch_scc1 L_A_notag
        v_mov_b32 v11, {TAG}
        v_mov_b32 v12, s60
        v_mov_b32 v13, s61
        ds_write_b64 v11, v[12:13]
        L_A_notag:
        """)
        self.lds_signal(F_X, 4)
        self.stamp(2)
        A("s_cmp_lg_u32 s3, 0\ns_cbranch_scc1 L_A_poll")
        A(f"""
        v_bfe_u32 v3, v0, 2, 2
        v_lshl_add_u32 v4, v2, 2, v3
        v_bfe_u32 v5, v4, 1, 2
        v_lshlrev_b32 v5, 5, v5
        v_lshl_add_u32 v5, v4, 7, v5
        v_and_b32 v6, 3, v0
        v_lshl_add_u32 v5, v6, 3, v5
        v_add_u32 v8, {WQ}, v5
        v_xor_b32 v9, 32, v8
        v_xor_b32 v10, 64, v8
        v_xor_b32 v11, 0x60, v8
        v_mul_u32_u24 v12, 1152, v3
        v_lshl_add_u32 v12, v2, 3, v12
        s_mul_i32 s44, s32, 288
        s_add_u32 s44, s44, {XN}
        v_add_u32 v12, s44, v12
        s_lshl_b32 s44, s30, 15
        s_lshl_b32 s45, s32, 11
        s_add_u32 s44, s44, s45
        s_lshl_b32 s45, s33, 9
        s_add_u32 s44, s44, s45
        s_add_u32 s44, s44, {W_Q}
        v_lshlrev_b32 v13, 13, v2
        v_and_b32 v4, 15, v0
        v_lshl_add_u32 v13, v4, 4, v13
        v_add_u32 v13, s44, v13
        v_mov_b32 v53, s60
        v_mov_b32 v55, s61
        """)
        self.lds_wait(F_X, 4, 4)
        for k in range(4):
            A(f"ds_read2_b64 v[{16+4*k}:{19+4*k}], v12 offset0:{8*k} offset1:{8*k+4}")
        A("ds_read_b64 v[32:33], v12 offset:256\nv_mov_b32 v5, s60\nv_mov_b32 v7, s61")
        self.lds_wait(F_WQ, 8, 14)
        self.stamp(3)
        reads = []
        for ct in range(4):
            base = 56 + 18 * ct
            for k in range(4):
                reads.append(f"ds_read_b64_tr_b16 v[{base+4*k}:{base+4*k+1}], v{8+ct} offset:{4096*k}")
                reads.append(f"ds_read_b64_tr_b16 v[{base+4*k+2}:{base+4*k+3}], v{8+ct} offset:{4096*k+2048}")
            reads.append(f"ds_read_b64_tr_b16 v[{base+16}:{base+17}], v{8+ct} offset:16384")
        pos = 0
        for ct in range(4):
            upto = min(36, 9 * (ct + 1) + 5)
            while pos < upto:
                A(reads[pos]); pos += 1
            base = 56 + 18 * ct
            d = f"v[{36+4*ct}:{39+4*ct}]"
            A(f"s_waitcnt lgkmcnt({5 if ct < 3 else 0})")
            A(f"v_mfma_f32_16x16x16_bf16 {d}, v[32:33], v[{base+16}:{base+17}], 0")
            A("s_nop 5")
            for k in range(4):
                A(f"v_mfma_f32_16x16x32_bf16 {d}, v[{16+4*k}:{19+4*k}], v[{base+4*k}:{base+4*k+3}], {d}")
        qp = self.opt("qst", "sc1")
        if self.opt("noq", 0) < 2: A(f"""
        v_mov_b32 v4, v36
        v_mov_b32 v6, v40
        v_mov_b32 v52, v44
        {'' if self.opt('qhalf', 0) else 'global_store_dwordx4 v13, v[4:7], s[28:29] ' + qp}
        s_nop 4
        v_mov_b32 v54, v48
        global_store_dwordx4 v13, v[52:55], s[28:29] offset:256 {qp}
        """)
        self.stamp(4)
        self.lds_signal(F_QP, 8)
        A("L_A_poll:")
        A(f"""
        s_lshl_b32 s44, s30, 15
        s_lshl_b32 s45, s32, 13
        s_add_u32 s44, s44, s45
        s_lshl_b32 s45, s3, 9
        s_add_u32 s44, s44, s45
        s_add_u32 s44, s44, {W_Q}
        s_add_u32 s48, s28, s44
        s_addc_u32 s49, s29, 0
        v_lshrrev_b32 v20, 5, v0
        v_and_b32 v3, 31, v0
        v_lshlrev_b32 v21, 12, v20
        v_lshl_add_u32 v21, v3, 4, v21
        v_add_u32 v21, s44, v21
        s_lshl_b32 s44, s3, 7
        s_add_u32 s44, s44, {QS}
        v_and_b32 v3, 15, v0
        v_lshlrev_b32 v22, 1, v3
        v_lshl_add_u32 v22, v20, 5, v22
        v_bfe_u32 v23, v0, 4, 1
        v_lshl_add_u32 v22, v23, 6, v22
        v_add_u32 v22, s44, v22
        v_bfe_u32 v24, v0, 3, 1
        v_lshlrev_b32 v24, 8, v24
        v_lshl_add_u32 v24, v2, 4, v24
        v_add_u32 v24, {QS}, v24
        v_and_b32 v25, 3, v0
        v_bfe_u32 v26, v0, 2, 2
        v_lshl_add_u32 v25, v25, 2, v26
        v_lshlrev_b32 v25, 8, v25
        v_xor_b32 v26, v2, v3
        v_lshl_add_u32 v25, v26, 4, v25
        s_lshl_b32 s44, s3, 15
        v_add_u32 v28, s44, v25
        v_xor_b32 v29, 64, v28
        v_xor_b32 v30, 0x80, v28
        v_xor_b32 v31, 0xc0, v28
        """)
        self.lds_wait(F_QP, 1, 8, sleep=2)
        if self.opt("qtk", 0):
            self.lds_wait(F_T, self.opt("qtk", 0), 8, sleep=2)
            A("s_branch L_qpoll")
        A(f"""
        {'s_branch L_qskip' if self.opt('noq', 0) else ''}
        L_qsp:
        s_load_dwordx2 s[52:53], s[48:49], 0x1f8 glc
        s_load_dwordx2 s[54:55], s[48:49], 0x9f8 glc
        s_load_dwordx2 s[56:57], s[48:49], 0x11f8 glc
        s_load_dwordx2 s[58:59], s[48:49], 0x19f8 glc
        """)
        self.guard(16)
        A(f"""
        s_sleep {self.opt('qsleep', 2)}
        s_waitcnt lgkmcnt(0)
        s_xor_b32 s53, s53, s61
        s_xor_b32 s55, s55, s61
        s_xor_b32 s57, s57, s61
        s_xor_b32 s59, s59, s61
        s_or_b32 s53, s53, s55
        s_or_b32 s57, s57, s59
        s_or_b32 s53, s53, s57
        s_cbranch_scc1 L_qsp
        {'s_mov_b32 exec_lo, 0xffff0000' if self.opt('qhalf', 0) else ''}
        {'s_mov_b32 exec_hi, 0xffff0000' if self.opt('qhalf', 0) else ''}
        L_qpoll:
        global_load_dwordx4 v[8:11], v21, s[28:29] sc1
        global_load_dwordx4 v[12:15], v21, s[28:29] offset:2048 sc1
        """)
        self.guard(64)
        A("s_waitcnt vmcnt(0)")
        self.tagchk([8, 12], 16, 17)
        A("""
        s_cbranch_vccnz L_qpoll
        L_qskip:
        s_mov_b64 exec, -1
        v_add_f32 v8, v8, v12
        v_add_f32 v10, v10, v14
        s_nop 1
        v_permlane32_swap_b32 v8, v10
        v_add_f32 v8, v8, v10
        v_cvt_pk_bf16_f32 v8, v8, v8
        ds_write_b16 v22, v8
        """)
        self.lds_signal(F_Q, 6)
        self.stamp(5)
        self.lds_wait(F_Q, 4, 6)
        for t in range(4):
            A(f"ds_read_b128 v[{8+4*t}:{11+4*t}], v24 offset:{64*t}")
        self.lds_wait(F_K, 8, 6, sleep=1)
        self.stamp(6)

        def kread(tau):
            for t in range(4):
                r = 64 + ((tau % 4) * 4 + t) * 4
                A(f"ds_read_b128 v[{r}:{r+3}], v{28+t} offset:{4096*tau}")
        for tau in range(2):
            kread(tau)
        for tau in range(8):
            if tau + 2 < 8:
                kread(tau + 2)
            out = min(2, 7 - tau) * 4
            for t in range(4):
                r = 64 + ((tau % 4) * 4 + t) * 4
                A(f"s_waitcnt lgkmcnt({out + 3 - t})")
                c = "0" if t == 0 else f"v[{32+4*tau}:{35+4*tau}]"
                A(f"v_mfma_f32_16x16x32_bf16 v[{32+4*tau}:{35+4*tau}], v[{r}:{r+3}], v[{8+4*t}:{11+4*t}], {c}")
        A("s_mov_b32 s44, 0x02020202")
        for tau in range(1, 8):
            A(f"""
            s_mov_b32 exec_lo, s44
            s_mov_b32 exec_hi, s44
            v_mov_b32 v32, v{32+4*tau}
            v_mov_b32 v33, v{33+4*tau}
            v_mov_b32 v34, v{34+4*tau}
            v_mov_b32 v35, v{35+4*tau}
            s_lshl_b32 s44, s44, 1
            """)
        A("s_mov_b64 exec, -1\nv_mov_b32 v20, 0x3db504f3")
        for i in (32, 34):
            self.rb2(i, i + 1)
            A(f"v_mul_f32 v{i}, v{i}, v20\nv_mul_f32 v{i+1}, v{i+1}, v20")
            self.rb2(i, i + 1)
        mx = "v_max_f32_dpp v3, v3, v3"
        A(f"""
        v_max_f32 v3, v32, v33
        v_max3_f32 v3, v3, v34, v35
        v_bfe_u32 v5, v0, 3, 1
        v_lshlrev_b32 v5, 4, v5
        {mx} quad_perm:[1,0,3,2] {DPPF}
        v_add_u32 v5, {MA}, v5
        s_lshl_b32 s44, s3, 2
        {mx} quad_perm:[2,3,0,1] {DPPF}
        v_add_u32 v6, s44, v5
        s_nop 0
        {mx} row_half_mirror {DPPF}
        """)
        self.xlane45(3, 4, "max")
        A("ds_write_b32 v6, v3")
        self.lds_signal(F_M, 8)
        A(f"""
        v_bfe_u32 v7, v0, 3, 1
        v_lshlrev_b32 v7, 11, v7
        v_lshl_add_u32 v7, v2, 6, v7
        v_bfe_u32 v8, v0, 2, 1
        v_lshl_add_u32 v7, v8, 8, v7
        v_and_b32 v8, 3, v0
        v_lshl_add_u32 v7, v8, 4, v7
        s_lshl_b32 s44, s3, 9
        s_add_u32 s44, s44, {PB}
        v_add_u32 v14, s44, v7
        """)
        self.lds_wait(F_M, 4, 8)
        sm = "v_add_f32_dpp v12, v12, v12"
        A(f"""
        ds_read_b128 v[8:11], v5
        v_mov_b32 v20, 0x3fb8aa3b
        s_waitcnt lgkmcnt(0)
        v_max_f32 v3, v8, v9
        v_max3_f32 v3, v3, v10, v11
        v_mul_f32 v4, v3, v20
        v_fma_f32 v32, v32, v20, -v4
        v_fma_f32 v33, v33, v20, -v4
        v_fma_f32 v34, v34, v20, -v4
        v_fma_f32 v35, v35, v20, -v4
        v_exp_f32 v32, v32
        v_exp_f32 v33, v33
        v_exp_f32 v34, v34
        v_exp_f32 v35, v35
        v_add_f32 v12, v32, v33
        v_cvt_pk_bf16_f32 v36, v32, v32
        v_add_f32 v13, v34, v35
        v_cvt_pk_bf16_f32 v37, v33, v33
        v_add_f32 v12, v12, v13
        v_cvt_pk_bf16_f32 v38, v34, v34
        v_cvt_pk_bf16_f32 v39, v35, v35
        {sm} quad_perm:[1,0,3,2] {DPPF}
        ds_write_b128 v14, v[36:39]
        s_nop 0
        {sm} quad_perm:[2,3,0,1] {DPPF}
        s_nop 1
        {sm} row_half_mirror {DPPF}
        """)
        self.xlane45(12, 13, "add")
        A(f"ds_write_b32 v6, v12 offset:{LA-MA}")
        self.lds_signal(F_P, 6, rtn=True)
        A(f"""
        s_getreg_b32 s63, hwreg(HW_REG_XCC_ID, 0, 4)
        s_waitcnt lgkmcnt(0)
        v_readfirstlane_b32 s46, v7
        s_nop 0
        s_cmp_lg_u32 s46, 3
        s_cbranch_scc1 L_A_noml
        ds_read_b128 v[12:15], v5 offset:{LA-MA}
        s_xor_b32 s45, s61, s63
        v_mov_b32 v8, v3
        v_mov_b32 v9, s60
        v_mov_b32 v11, s45
        s_lshl_b32 s44, s35, 7
        s_lshl_b32 s45, s33, 4
        s_add_u32 s44, s44, s45
        s_add_u32 s44, s44, {W_ML}
        v_bfe_u32 v5, v0, 3, 1
        v_lshlrev_b32 v5, 6, v5
        v_add_u32 v5, s44, v5
        s_mov_b64 exec, 0x101
        s_waitcnt lgkmcnt(0)
        v_add_f32 v12, v12, v13
        v_add_f32 v14, v14, v15
        v_add_f32 v10, v12, v14
        global_store_dwordx4 v5, v[8:11], s[28:29] sc1
        s_mov_b64 exec, -1
        L_A_noml:
        """)
        self.stamp(9)
        A(f"""
        s_lshl_b32 s44, s30, 8
        s_lshl_b32 s45, s3, 6
        s_add_u32 s44, s44, s45
        s_mul_i32 s44, s44, 1152
        s_add_u32 s40, s12, s44
        s_addc_u32 s41, s13, 0
        s_mov_b32 s42, {64*1152}
        v_lshrrev_b32 v20, 3, v0
        v_bfe_u32 v3, v0, 4, 2
        v_lshlrev_b32 v3, 1, v3
        v_and_b32 v4, 7, v0
        v_xor_b32 v3, v3, v4
        v_lshlrev_b32 v3, 4, v3
        v_mul_u32_u24 v20, 1152, v20
        v_add_u32 v20, v20, v3
        v_add_u32 v20, 0x400, v20
        v_and_b32 v3, 15, v0
        v_lshlrev_b32 v3, 4, v3
        v_lshlrev_b32 v4, 5, v2
        v_xor_b32 v3, v3, v4
        v_xor_b32 v4, 0x80, v3
        v_mul_u32_u24 v21, 1152, v2
        s_lshl_b32 s45, s33, 8
        v_add3_u32 v22, v21, v4, s45
        v_add3_u32 v21, v21, v3, s45
        v_add_u32 v22, {4*1152}, v22
        s_mov_b32 s56, s3
        s_cmp_eq_u32 s33, s32
        s_cselect_b32 s57, 1, 0
        """)
        self.lds_wait(F_P, 4, 6)
        self.stamp(10)
        wp = self.opt("wo", "")
        A(f"""
        s_lshl_b32 m0, s3, 14
        s_mov_b32 s44, 0
        L_woloop:
        buffer_load_dwordx4 v21, s[40:43], s44 offen {wp} lds
        s_add_u32 m0, m0, 0x400
        s_nop 0
        buffer_load_dwordx4 v22, s[40:43], s44 offen {wp} lds
        s_add_u32 m0, m0, 0x400
        s_add_u32 s44, s44, {8*1152}
        s_cmp_lt_u32 s44, {64*1152}
        s_cbranch_scc1 L_woloop
        s_cmp_eq_u32 s57, 0
        s_cbranch_scc1 L_wo8done
        s_lshl_b32 s44, s3, 13
        s_add_u32 m0, s44, {WO8}
        s_mov_b32 s44, 0
        L_wo8:
        buffer_load_dwordx4 v20, s[40:43], s44 offen {wp} lds
        s_add_u32 m0, m0, 0x400
        s_add_u32 s44, s44, {8*1152}
        s_cmp_lt_u32 s44, {64*1152}
        s_cbranch_scc1 L_wo8
        L_wo8done:
        s_cmp_lg_u32 s3, 0
        s_cbranch_scc1 L_A_wowait
        """)
        if self.opt("noml", 0): A("s_branch L_A_wowait")
        A(f"""
        s_lshl_b32 s44, s35, 12
        s_lshl_b32 s45, s33, 10
        s_add_u32 s44, s44, s45
        s_add_u32 s44, s44, {W_O}
        v_add_u32 v3, s44, v1
        global_load_dwordx4 v[24:27], v3, s[28:29] sc1
        s_lshl_b32 s45, s35, 7
        s_add_u32 s45, s45, {W_ML}
        s_add_u32 s48, s28, s45
        s_addc_u32 s49, s29, 0
        v_subrev_u32 v15, s33, v2
        v_and_b32 v15, 3, v15
        v_lshlrev_b32 v15, 2, v15
        v_add_u32 v15, {FB}, v15
        s_mov_b32 s58, 0
        L_mlpoll:
        s_load_dwordx16 s[4:19], s[48:49], 0 glc
        """)
        self.guard(16)
        A("s_sleep 2\ns_waitcnt lgkmcnt(0)\ns_mov_b32 s44, 0\ns_mov_b32 s47, 0")
        for i in range(4):
            A(f"""
            s_xor_b32 s45, s{4+4*i+1}, s60
            s_or_b32 s44, s44, s45
            s_xor_b32 s45, s{4+4*i+3}, s61
            s_xor_b32 s46, s45, s63
            s_or_b32 s47, s47, s46
            s_lshr_b32 s45, s45, 4
            s_or_b32 s44, s44, s45
            """)
        A(f"""
        s_cbranch_scc1 L_mlpoll
        v_mov_b32 v8, s4
        v_mov_b32 v10, s6
        v_mov_b32 v9, s8
        v_mov_b32 v11, s10
        v_cmp_eq_u32 vcc, 1, v2
        v_mov_b32 v12, s12
        v_mov_b32 v13, s14
        v_cndmask_b32 v8, v8, v9, vcc
        v_cndmask_b32 v10, v10, v11, vcc
        v_cmp_eq_u32 vcc, 2, v2
        v_mov_b32 v9, s16
        v_mov_b32 v11, s18
        v_cndmask_b32 v8, v8, v12, vcc
        v_cndmask_b32 v10, v10, v13, vcc
        v_cmp_eq_u32 vcc, 3, v2
        s_nop 1
        v_cndmask_b32 v8, v8, v9, vcc
        v_cndmask_b32 v10, v10, v11, vcc
        v_mov_b32 v12, v8
        """)
        self.xlane45(12, 13, "max")
        A("""
        v_sub_f32 v12, v8, v12
        v_mul_f32 v12, 0x3fb8aa3b, v12
        v_exp_f32 v12, v12
        s_nop 0
        v_mul_f32 v13, v12, v10
        """)
        self.xlane45(13, 14, "add")
        A(f"""
        v_rcp_f32 v13, v13
        s_add_u32 s48, s48, 64
        s_addc_u32 s49, s49, 0
        v_mul_f32 v12, v12, v13
        ds_write_b32 v15, v12
        v_add_u32 v15, 16, v15
        s_add_u32 s58, s58, 1
        s_cmp_lt_u32 s58, 2
        s_cbranch_scc1 L_mlpoll
        s_cmp_eq_u32 s47, 0
        s_cselect_b32 s44, 2, 1
        v_mov_b32 v8, {F_F}
        v_mov_b32 v9, s44
        ds_write_b32 v8, v9
        """)
        self.stamp(11)
        A("L_A_wowait:\ns_waitcnt vmcnt(0)")
        self.lds_signal(F_WO, 6)
        A("s_branch L_proj")

    def gen_M(self):
        A = self.A
        A(f"""
        L_M2:
        s_mul_i32 s58, s96, 1821
        s_lshr_b32 s58, s58, 16
        s_mul_i32 s59, s58, 36
        s_sub_u32 s59, s96, s59
        s_lshl_b32 s44, s34, 6
        v_add_u32 v13, s44, v0
        v_lshlrev_b32 v14, 2, v13
        v_lshlrev_b32 v13, 4, v13
        v_add_u32 v15, 0x1000, v13
        v_add_u32 v14, 0x2000, v14
        v_and_b32 v92, 7, v0
        v_lshrrev_b32 v3, 5, v0
        v_lshl_add_u32 v92, v92, 1, v3
        s_mul_i32 s44, s58, 1152
        s_lshl_b32 s45, s59, 5
        s_add_u32 s44, s44, s45
        v_lshlrev_b32 v93, 1, v92
        v_add_u32 v93, s44, v93
        v_mov_b32 v95, 0
        """)
        self.lds_wait(F_X, 4, 4, sleep=1)
        for (p, r) in (("s[16:17]", 96), ("s[18:19]", 106), ("s[20:21]", 116)):
            A(f"""
            global_load_dwordx4 v[{r}:{r+3}], v13, {p}
            global_load_dwordx4 v[{r+4}:{r+7}], v15, {p}
            global_load_dword v{r+8}, v14, {p}
            """)
        A("global_load_ushort v94, v93, s[4:5]\nglobal_load_ushort v95, v95, s[22:23]")
        self.read_tag(4)
        A(f"""
        s_mul_i32 s44, s58, 1152
        s_add_u32 s44, s44, {XN}
        v_lshlrev_b32 v14, 1, v0
        v_add_u32 v11, s44, v1
        v_add_u32 v12, s44, v14
        ds_read_b128 v[16:19], v11
        ds_read_u16 v20, v12 offset:1024
        s_waitcnt lgkmcnt(0)
        """)
        self.unpack9(16, 20)
        A("s_call_b64 s[50:51], L_ln")
        A(f"""
        v_lshlrev_b32 v11, 5, v0
        v_add_u32 v11, {HB}, v11
        v_lshlrev_b32 v12, 2, v0
        v_add_u32 v12, {HB}, v12
        ds_write_b128 v11, v[22:25]
        ds_write_b128 v11, v[26:29] offset:16
        ds_write_b32 v12, v30 offset:2048
        s_lshl_b32 s44, s59, 6
        s_add_u32 s44, s44, {HB}
        v_mov_b32 v15, s44
        s_waitcnt vmcnt(0)
        """)
        self.stamp(1)
        for (r, dst) in ((96, 32), (106, 50), (116, 68)):
            for i in range(9):
                A(f"v_lshlrev_b32 v{dst+2*i}, 16, v{r+i}\nv_and_b32 v{dst+2*i+1}, 0xffff0000, v{r+i}")
        K0 = -2.0 * math.sqrt(2.0 / math.pi) * math.log2(math.e)
        K1 = K0 * 0.044715
        A(f"""
        v_mov_b32 v30, {f2u(K0):#x}
        v_mov_b32 v31, {f2u(K1):#x}
        s_lshl_b32 s44, s34, 4
        s_add_u32 s44, s44, {GP}
        v_lshlrev_b32 v14, 2, v2
        v_add_u32 v14, s44, v14
        s_mov_b32 s47, 0
        s_mov_b32 s48, 0x00010001
        s_mov_b32 s49, 0x00010001
        s_waitcnt lgkmcnt(0)
        ds_read_b32 v4, v15
        L_mlp:
        v_mov_b32 v6, 0
        v_mov_b32 v7, 0
        s_waitcnt lgkmcnt(0)
        """)
        for grp in range(3):
            ks = [3 * grp + j for j in range(3)]
            U = lambda j: f"v[{8+2*j}:{9+2*j}]"
            T = lambda j: f"v[{16+2*j}:{17+2*j}]"
            P = lambda base, k: f"v[{base+2*k}:{base+2*k+1}]"
            for j, k in enumerate(ks): A(f"v_pk_fma_f32 {U(j)}, {P(32,k)}, v[4:5], {P(50,k)} op_sel_hi:[1,0,1]")
            for j, k in enumerate(ks): A(f"v_pk_mul_f32 {T(j)}, {U(j)}, {U(j)}")
            for j, k in enumerate(ks): A(f"v_pk_fma_f32 {T(j)}, {T(j)}, v[30:31], v[30:31] op_sel:[0,1,0] op_sel_hi:[1,1,0]")
            for j, k in enumerate(ks): A(f"v_pk_mul_f32 {T(j)}, {T(j)}, {U(j)}")
            for j, k in enumerate(ks): A(f"v_exp_f32 v{16+2*j}, v{16+2*j}\nv_exp_f32 v{17+2*j}, v{17+2*j}")
            for j, k in enumerate(ks): A(f"v_pk_mul_f32 {U(j)}, {U(j)}, {P(68,k)}")
            for j, k in enumerate(ks): A(f"v_pk_add_f32 {T(j)}, {T(j)}, 1.0 op_sel_hi:[1,0]")
            for j, k in enumerate(ks): A(f"v_rcp_f32 v{16+2*j}, v{16+2*j}\nv_rcp_f32 v{17+2*j}, v{17+2*j}")
            A("v_add_u32 v15, 4, v15\nds_read_b32 v4, v15" if grp == 2 else "s_nop 0")
            for j, k in enumerate(ks): A(f"v_pk_fma_f32 v[6:7], {U(j)}, {T(j)}, v[6:7]")
        ins = "v_add_f32_dpp v6, v6, v6"
        A(f"""
        v_add_f32 v6, v6, v7
        s_nop 1
        {ins} quad_perm:[1,0,3,2] {DPPF}
        s_nop 1
        {ins} quad_perm:[2,3,0,1] {DPPF}
        s_nop 1
        {ins} row_half_mirror {DPPF}
        s_nop 1
        {ins} row_mirror {DPPF}
        s_mov_b64 exec, s[48:49]
        ds_write_b32 v14, v6
        s_mov_b64 exec, -1
        v_add_u32 v14, 64, v14
        s_add_u32 s47, s47, 1
        s_cmp_lt_u32 s47, 16
        s_cbranch_scc1 L_mlp
        s_waitcnt lgkmcnt(0)
        """)
        self.lds_signal(F_G, 8)
        self.stamp(2)
        A(f"""
        s_cmp_lg_u32 s34, 0
        s_cbranch_scc1 L_end
        s_setprio 3
        v_lshlrev_b32 v6, 6, v92
        v_add_u32 v6, {GP}, v6
        s_lshl_b32 s44, s96, 11
        s_add_u32 s44, s44, {W_S}
        v_add_u32 v7, s44, v1
        global_load_dwordx4 v[32:35], v7, s[28:29] sc1
        global_load_dwordx4 v[36:39], v7, s[28:29] offset:1024 sc1
        """)
        self.lds_wait(F_G, 4, 8, sleep=1)
        A("""
        ds_read_b128 v[8:11], v6
        ds_read_b128 v[12:15], v6 offset:16
        ds_read_b128 v[16:19], v6 offset:32
        ds_read_b128 v[20:23], v6 offset:48
        s_waitcnt lgkmcnt(0)
        """)
        for i in range(9, 24):
            A(f"v_add_f32 v8, v8, v{i}")
        self.rb(8)
        A("v_lshlrev_b32 v4, 16, v94\nv_lshlrev_b32 v5, 16, v95\nv_add_f32 v8, v8, v5")
        self.rb(8)
        A("""
        v_mul_f32 v9, 0xbfb8aa3b, v8
        v_exp_f32 v9, v9
        s_nop 0
        v_add_f32 v9, 1.0, v9
        v_rcp_f32 v9, v9
        s_nop 0
        v_mul_f32 v5, v8, v9
        """)
        self.rb(5)
        A(f"""
        v_bfe_u32 v8, v0, 3, 2
        v_cmp_eq_u32 s[52:53], 0, v8
        s_waitcnt vmcnt(0)
        """)
        self.stamp(3)
        if self.opt("notail", 0) or self.opt("cut", 0):
            A("s_branch L_end")
        self.lds_wait(F_OB, 1, 8, sleep=1)
        self.stamp(4)
        if self.opt("mask2", 1):
            self.poll2m(7, 1024, 32, 16, "L_spoll", sleep=self.opt("ssleep", 0), pol=self.opt("spol", "sc1").replace("_", " "))
            A("v_add_f32 v10, v32, v36\nv_add_f32 v11, v34, v38")
        else:
            self.poll2(7, 1024, 32, 40, 16, "L_spoll",
                   lambda b: A(f"v_add_f32 v10, v{b}, v{b+4}\nv_add_f32 v11, v{b+2}, v{b+6}"))
        A(f"""
        s_nop 1
        v_permlane32_swap_b32 v10, v11
        v_add_f32 v10, v10, v11
        v_mov_b32 v11, v10
        s_nop 1
        v_permlane16_swap_b32 v10, v11
        v_add_f32 v10, v10, v11
        s_nop 1
        v_add_f32_dpp v10, v10, v10 row_ror:8 {DPPF}
        """)
        self.rb(10)
        A("v_mul_f32 v10, v10, v5")
        self.rb(10)
        A(f"""
        v_add_f32 v10, v10, v4
        v_cvt_pk_bf16_f32 v10, v10, v10
        s_mov_b64 exec, s[52:53]
        global_store_short v93, v10, s[24:25] {self.opt('opol', '').replace('_', ' ')}
        s_mov_b64 exec, -1
        """)
        self.stamp(5)
        A(f"""
        s_cmp_lg_u32 s96, 0
        s_cbranch_scc1 L_end
        v_mov_b32 v8, 0
        v_mov_b32 v10, s60
        v_mov_b32 v11, s61
        s_mov_b64 exec, 1
        global_store_dwordx2 v8, v[10:11], s[28:29] offset:{W_EPOCH}
        s_mov_b64 exec, -1
        """)
        if self.opt("amp", 0):
            A(f"""
            s_memrealtime s[66:67]
            s_waitcnt lgkmcnt(0)
            s_sub_u32 s68, s66, s64
            s_mul_i32 s68, s68, {self.opt("amp", 0)}
            L_amp:
            s_memrealtime s[70:71]
            s_waitcnt lgkmcnt(0)
            s_sub_u32 s69, s70, s66
            s_cmp_lt_u32 s69, s68
            s_cbranch_scc1 L_amp
            """)


if __name__ == "__main__":
    import argparse
    ap = argparse.ArgumentParser()
    ap.add_argument("--out", default="recurrent_scan__sliding_block_cached__mixer_token_mlp__decode.s")
    ap.add_argument("--stamps", action="store_true")
    ap.add_argument("--opt", action="append", default=[])
    a = ap.parse_args()
    opts = dict(x.split("=", 1) for x in a.opt)
    open(a.out, "w").write(G(a.stamps, opts).gen())
```

```python
import sys, math, struct
NAME = "recurrent_scan__sliding_block_cached__mixer_token_mlp__decode_kernel"

KBUF = 0
WQ   = 131072
PB   = WQ
OPART = WQ + 4096
XN   = WQ + 18432
HB   = XN + 4608
QS   = HB + 2304
GP   = QS + 512
INIT = GP + 1024
(F_X, F_Q, F_K, F_M, F_P, F_WO, F_O, F_OB, F_G, F_T, F_WQ, F_QP, F_F, F_S, F_VI) = [INIT + 4 * i for i in range(15)]
F_L = F_S
TAG  = INIT + 64
FB   = INIT + 128
MA   = INIT + 96
LA   = INIT + 192
OB   = INIT + 512
LDS_BYTES = INIT + 1024
assert LDS_BYTES <= 163840, LDS_BYTES
WO8 = 65536
W_EPOCH = 0
W_Q  = 0x1000
W_ML = 0x90000
W_ID = 0x800
W_O  = 0xA0000
W_S  = 0x140000
W_G  = 0x94000
STAMP_OFF = 0x10000000
LIMIT = 0x2000000
f2u = lambda f: struct.unpack("<I", struct.pack("<f", f))[0]
DPPF = "row_mask:0xf bank_mask:0xf"


DOC = '''
; ---------------------------------------------------------------------------------------------
; owns keys [512s, 512s+512) of the 2048-key window of (b, kvh) for both query heads of that kv head.
; Hand-offs between workgroups go through d_ws as 16-byte granules {data, tagL, data, tagH}; the 64-bit tag
; is (epoch word found in d_ws on entry) + constant, and the new epoch is stored at the end of the launch.
; ---------------------------------------------------------------------------------------------
'''


class G:
    def __init__(self, stamps=False, opts=None):
        self.L = []
        self.stamps = stamps
        self.o = opts or {}
        self.uid = 0

    def opt(self, k, d):
        v = self.o.get(k, d)
        return type(d)(v) if not isinstance(d, str) else v

    def A(self, s):
        for line in s.strip("\n").split("\n"):
            t = line.strip()
            if not t:
                continue
            self.L.append(t if t.endswith(":") else "  " + t)

    def lab(self, p="L"):
        self.uid += 1
        return f"{p}_{self.uid}"

    def stamp(self, i):
        if self.stamps:
            self.A(f"s_memrealtime s[{64+2*i}:{65+2*i}]\ns_waitcnt lgkmcnt(0)")

    def guard(self, inc):
        inc = 1 if inc == 1 else 4
        self.A(f"s_add_u32 s62, s62, {inc}\ns_cmp_gt_u32 s62, {LIMIT:#x}\ns_cbranch_scc1 L_end")

    def lds_wait(self, addr, val, vt, sleep=0):
        l = self.lab("LW")
        self.A(f"v_mov_b32 v{vt}, {addr}\n{l}:\nds_read_b32 v{vt+1}, v{vt}")
        self.guard(1)
        if sleep:
            self.A(f"s_sleep {sleep}")
        self.A(f"""
        s_waitcnt lgkmcnt(0)
        v_readfirstlane_b32 s46, v{vt+1}
        s_nop 0
        s_cmp_lt_u32 s46, {val}
        s_cbranch_scc1 {l}
        """)

    def lds_signal(self, addr, vt, rtn=False):
        self.A(f"v_mov_b32 v{vt}, {addr}\nv_mov_b32 v{vt+1}, 1\ns_mov_b64 exec, 1")
        self.A(f"ds_add_rtn_u32 v{vt+1}, v{vt}, v{vt+1}" if rtn else f"ds_add_u32 v{vt}, v{vt+1}")
        self.A("s_mov_b64 exec, -1")

    def wave_sum(self, v, s):
        ins = f"v_add_f32_dpp v{v}, v{v}, v{v}"
        self.A(f"""
        s_nop 1
        {ins} quad_perm:[1,0,3,2] {DPPF}
        s_nop 1
        {ins} quad_perm:[2,3,0,1] {DPPF}
        s_nop 1
        {ins} row_half_mirror {DPPF}
        s_nop 1
        {ins} row_mirror {DPPF}
        s_nop 1
        {ins} row_bcast:15 row_mask:0xa bank_mask:0xf
        s_nop 1
        {ins} row_bcast:31 row_mask:0xc bank_mask:0xf
        s_nop 0
        v_readlane_b32 s{s}, v{v}, 63
        s_nop 1
        """)

    def rb(self, v):
        self.A(f"v_cvt_pk_bf16_f32 v{v}, v{v}, v{v}\nv_and_b32 v{v}, 0xffff0000, v{v}")

    def rb2(self, a, b):
        self.A(f"v_cvt_pk_bf16_f32 v{b}, v{a}, v{b}\nv_lshlrev_b32 v{a}, 16, v{b}\nv_and_b32 v{b}, 0xffff0000, v{b}")

    def read_tag(self, vt):
        self.A(f"""
        v_mov_b32 v{vt}, {TAG}
        ds_read_b64 v[{vt}:{vt+1}], v{vt}
        s_waitcnt lgkmcnt(0)
        v_readfirstlane_b32 s60, v{vt}
        v_readfirstlane_b32 s61, v{vt+1}
        s_nop 1
        """)

    def xlane45(self, v, t, op):
        self.A(f"""
        v_mov_b32 v{t}, v{v}
        s_nop 1
        v_permlane32_swap_b32 v{v}, v{t}
        v_{op}_f32 v{v}, v{v}, v{t}
        v_mov_b32 v{t}, v{v}
        s_nop 1
        v_permlane16_swap_b32 v{v}, v{t}
        v_{op}_f32 v{v}, v{v}, v{t}
        """)

    def tagchk(self, sets, acc, t):
        first = True
        for b in sets:
            if first:
                self.A(f"v_xor_b32 v{acc}, s60, v{b+1}\nv_xor_b32 v{t}, s61, v{b+3}\nv_or_b32 v{acc}, v{acc}, v{t}")
                first = False
            else:
                self.A(f"v_xor_b32 v{t}, s60, v{b+1}\nv_xor_b32 v{t+1}, s61, v{b+3}\nv_or3_b32 v{acc}, v{acc}, v{t}, v{t+1}")
        self.A(f"v_cmp_ne_u32 vcc, 0, v{acc}")

    def poll2(self, vaddr, off2, A0, B0, acc, name, consume, pre=None):
        A = self.A
        ld = lambda r: (f"global_load_dwordx4 v[{r}:{r+3}], v{vaddr}, s[28:29] sc1\n"
                        f"global_load_dwordx4 v[{r+4}:{r+7}], v{vaddr}, s[28:29] offset:{off2} sc1")
        A(ld(A0))
        if pre: pre()
        A(f"{name}:\n" + ld(B0))
        self.guard(64)
        A("s_waitcnt vmcnt(2)")
        self.tagchk([A0, A0 + 4], acc, acc + 1)
        A(f"s_cbranch_vccz {name}_a\n" + ld(A0) + "\ns_waitcnt vmcnt(2)")
        self.tagchk([B0, B0 + 4], acc, acc + 1)
        A(f"s_cbranch_vccnz {name}")
        consume(B0)
        A(f"s_branch {name}_ok\n{name}_a:")
        consume(A0)
        A(f"{name}_ok:")

    def poll2m(self, vaddr, off2, A0, acc, name, pre=None, sleep=0, pol="sc1"):
        A = self.A
        ld = (f"global_load_dwordx4 v[{A0}:{A0+3}], v{vaddr}, s[28:29] {pol}\n"
              f"global_load_dwordx4 v[{A0+4}:{A0+7}], v{vaddr}, s[28:29] offset:{off2} {pol}")
        A(ld)
        if pre: pre()
        A(f"{name}:")
        if sleep: A(f"s_sleep {sleep}")
        A(ld)
        self.guard(64)
        A("s_waitcnt vmcnt(2)")
        self.tagchk([A0, A0 + 4], acc, acc + 1)
        A(f"s_mov_b64 exec, vcc\ns_cbranch_vccnz {name}\ns_mov_b64 exec, -1")

    def frag_reads(self):
        A = self.A
        for d in range(3):
            A(f"v_mov_b32 v4, v{51+d}")
            for k in range(2):
                r = 96 + (d * 2 + k) * 4
                A(f"""
                ds_read_b64_tr_b16 v[{r}:{r+1}], v4
                v_add_u32 v4, s{57+d}, v4
                ds_read_b64_tr_b16 v[{r+2}:{r+3}], v4
                """)
                if k == 0:
                    A(f"v_add_u32 v4, s{57+d}, v4")
        A(f"""
        v_mov_b32 v61, s60
        v_mov_b32 v63, s61
        v_mov_b32 v4, {F_OB}
        v_cndmask_b32 v61, v61, v63, s[54:55]
        """)

    def gen(self):
        A = self.A
        for line in open("recurrent_scan__sliding_block_cached__mixer_token_mlp__decode.s.ref").read().split("\n"):
            if line.startswith("; @launch"):
                self.L.append(f"; @launch grid=(256,1,1) block=(1024,1,1) lds={LDS_BYTES}")
                break
            self.L.append(line)
        self.L += DOC.strip("\n").split("\n")
        self.L += ['.amdgcn_target "amdgcn-amd-amdhsa--gfx950"', ".text", f".globl {NAME}", ".p2align 8",
                   f".type {NAME},@function", f"{NAME}:"]
        if self.opt("amp", 0):
            A("s_memrealtime s[64:65]")
        if self.stamps:
            A("s_memrealtime s[64:65]")
            for i in range(66, 96):
                A(f"s_mov_b32 s{i}, 0")
        cons = [1, 2, 4, 6, 8, 9, 12, 13, 14] if self.opt("cmap", 2) == 2 else [1, 2, 3, 4, 6, 7, 8, 9, 11]
        LUT = 0
        for u in range(16):
            nib = cons.index(u) if u in cons else (15 if u % 5 == 0 else 14)
            LUT |= nib << (4 * u)
        A(f"""
        s_cmp_ge_u32 s2, 256
        s_cbranch_scc1 L_exit
        s_load_dwordx16 s[4:19], s[0:1], 0
        s_load_dwordx8 s[20:27], s[0:1], 64
        s_load_dwordx2 s[28:29], s[0:1], 96
        v_lshrrev_b32 v1, 6, v0
        v_and_b32 v0, 63, v0
        v_readfirstlane_b32 s3, v1
        s_and_b32 s30, s2, 15
        s_lshr_b32 s31, s2, 4
        {'s_xor_b32 s3, s3, 8' if self.opt('sfirst', 0) else ''}
        s_lshr_b32 s32, s31, 2
        s_and_b32 s33, s31, 3
        s_lshl_b32 s35, s32, 4
        s_add_u32 s35, s35, s30
        s_mov_b32 s96, {LUT & 0xffffffff:#x}
        s_mov_b32 s97, {LUT >> 32:#x}
        s_lshl_b32 s44, s31, 2
        s_lshr_b64 s[96:97], s[96:97], s44
        s_and_b32 s96, s96, 15
        s_lshl_b32 s96, s96, 4
        s_add_u32 s96, s96, s30
        s_mov_b32 s62, 0
        s_mov_b32 s39, 0x20000
        s_mov_b32 s43, 0x20000
        v_lshlrev_b32 v1, 4, v0
        v_lshrrev_b32 v2, 4, v0
        s_cmp_lt_u32 s3, 8
        s_cbranch_scc0 L_S
        s_cmp_lt_u32 s3, 4
        s_cbranch_scc0 L_M
        """)
        A(f"""
        s_setprio {self.opt('prioA', 3)}
        s_mul_i32 s44, s3, 1152
        s_movk_i32 s38, 1152
        v_lshlrev_b32 v14, 1, v0
        s_cmp_lg_u32 s3, 0
        s_cbranch_scc1 L_noinit
        v_mov_b32 v4, 0
        v_mov_b32 v5, 0
        v_mov_b32 v6, 0
        v_mov_b32 v7, 0
        v_add_u32 v3, {INIT}, v1
        ds_write_b128 v3, v[4:7]
        L_noinit:
        s_waitcnt lgkmcnt(0)
        s_add_u32 s36, s4, s44
        s_addc_u32 s37, s5, 0
        buffer_load_dwordx4 v[16:19], v1, s[36:39], 0 offen
        buffer_load_ushort v20, v14, s[36:39], 0 offen offset:1024
        s_load_dwordx2 s[60:61], s[28:29], {W_EPOCH}
        s_barrier
        s_branch {'L_end' if self.opt('kvonly', 0) else 'L_A'}
        """)
        A(f"""
        L_M:
        s_setprio {self.opt('prioM', 2)}
        s_sub_u32 s34, s3, 4
        s_lshr_b32 s46, s2, 3
        s_waitcnt lgkmcnt(0)
        s_cmp_lg_u32 s34, 3
        s_cbranch_scc1 L_nowarmc
        s_cmp_lt_u32 s46, (L_code_end-{NAME})>>10
        s_cbranch_scc0 L_nowarmc
        s_getpc_b64 s[44:45]
        L_pc:
        s_sub_u32 s44, s44, L_pc-{NAME}
        s_subb_u32 s45, s45, 0
        s_lshl_b32 s46, s46, 10
        v_add_u32 v3, s46, v1
        global_load_dwordx4 v[88:91], v3, s[44:45]
        L_nowarmc:
        s_cmp_lg_u32 s34, 2
        s_cbranch_scc1 L_nowarmw
        s_cmp_lt_u32 s46, 27
        s_cbranch_scc0 L_nowarmw
        s_mov_b64 s[44:45], s[16:17]
        s_cmp_lt_u32 s46, 9
        s_cbranch_scc1 L_warmw
        s_mov_b64 s[44:45], s[18:19]
        s_sub_u32 s46, s46, 9
        s_cmp_lt_u32 s46, 9
        s_cbranch_scc1 L_warmw
        s_mov_b64 s[44:45], s[20:21]
        s_sub_u32 s46, s46, 9
        L_warmw:
        s_lshl_b32 s46, s46, 10
        v_add_u32 v3, s46, v1
        global_load_dwordx4 v[88:91], v3, s[44:45]
        L_nowarmw:
        s_barrier
        s_cmp_lt_u32 s96, {0 if (self.opt('nom', 0) or self.opt('kvonly', 0)) else 144}
        s_cbranch_scc0 L_end
        s_branch L_M2
        """)
        A("L_S:")
        self.gen_S()
        self.gen_proj()
        self.gen_A()
        self.gen_LN()
        self.gen_M()
        A("L_end:")
        if self.stamps:
            A(f"""
            s_mov_b64 exec, -1
            s_waitcnt lgkmcnt(0)
            s_memrealtime s[94:95]
            s_lshl_b32 s44, s2, 4
            s_add_u32 s44, s44, s3
            s_lshl_b32 s44, s44, 7
            s_add_u32 s44, s44, {STAMP_OFF}
            s_add_u32 s28, s28, s44
            s_addc_u32 s29, s29, 0
            s_waitcnt vmcnt(0) lgkmcnt(0)
            """)
            for i in range(32):
                A(f"v_writelane_b32 v6, s{64+i}, {i}")
            A("""
            v_lshlrev_b32 v4, 2, v0
            s_mov_b32 exec_hi, 0
            global_store_dword v4, v6, s[28:29]
            """)
        A("L_exit:")
        A("s_endpgm")
        A("L_code_end:")
        self.L += ['.section .rodata,"a"', ".p2align 6", f".amdhsa_kernel {NAME}",
                   "  .amdhsa_next_free_vgpr 128", "  .amdhsa_next_free_sgpr 100", "  .amdhsa_accum_offset 128",
                   "  .amdhsa_group_segment_fixed_size 0", "  .amdhsa_kernarg_size 104", "  .amdhsa_user_sgpr_count 2",
                   "  .amdhsa_user_sgpr_kernarg_segment_ptr 1", "  .amdhsa_system_sgpr_workgroup_id_x 1",
                   ".end_amdhsa_kernel"]
        kp = self.opt("kvpol", "nt")
        if kp != "nt":
            self.L = [l.replace("offen nt", "offen " + kp.replace("_", " ").replace("def", "")) for l in self.L]
        return "\n".join(self.L) + "\n"

    def gen_S(self):
        A = self.A
        D = self.opt("depth", 4)
        IL = self.opt("ilv", 0)
        A(f"""
        s_setprio {self.opt('prioS', 1)}
        s_sub_u32 s34, s3, 8
        s_mul_i32 s44, s32, {144*8192}
        s_lshl_b32 s45, s30, 9
        s_add_u32 s44, s44, s45
        s_lshl_b32 s45, s33, 7
        s_add_u32 s44, s44, s45
        s_mov_b32 s42, {143*8192+128}
        v_lshrrev_b32 v4, 3, v0
        v_bfe_u32 v3, v0, 4, 2
        v_lshlrev_b32 v3, 1, v3
        v_and_b32 v5, 7, v0
        v_xor_b32 v3, v3, v5
        v_lshlrev_b32 v3, 4, v3
        v_lshl_add_u32 v4, v4, 13, v3
        s_lshl_b32 s45, s34, 10
        s_add_u32 m0, s45, {WQ}
        s_lshl_b32 s45, s34, 16
        s_lshl_b32 s46, s35, 21
        s_lshl_b32 s47, s33, {14 if IL else 17}
        s_add_u32 s46, s46, s47
        s_add_u32 s46, s46, {6144*256}
        s_mov_b32 s38, {0x74000 if IL else 0x20000}
        s_lshl_b32 s47, s34, {16 if IL else 14}
        s_add_u32 s47, s47, s46
        s_mul_i32 s51, s2, 5
        s_add_u32 s51, s51, s31
        v_lshlrev_b32 v3, 6, v2
        v_xor_b32 v3, v1, v3
        v_mov_b32 v5, {F_T}
        v_mov_b32 v6, 1
        s_mov_b32 s50, s34
        s_waitcnt lgkmcnt(0)
        s_add_u32 s40, s10, s44
        s_addc_u32 s41, s11, 0
        s_add_u32 s36, s6, s46
        s_addc_u32 s37, s7, 0
        {'s_branch L_wqdone' if self.opt('kvonly', 0) == 1 else ''}
        L_wqloop:
        buffer_load_dwordx4 v4, s[40:43], s45 offen nt lds
        s_add_u32 m0, m0, 0x2000
        s_add_u32 s45, s45, 0x80000
        s_cmp_lt_u32 s45, {18*65536}
        s_cbranch_scc1 L_wqloop
        L_wqdone:
        s_add_u32 s40, s8, s47
        s_addc_u32 s41, s9, 0
        s_movk_i32 s42, 0x4000
        """)
        self.stamp(1)
        A(f"""
        L_kloop:
        s_and_b32 s44, s50, 7
        s_lshr_b32 s45, s50, 3
        s_mul_i32 s46, s44, 3
        s_add_u32 s46, s46, s51
        s_add_u32 s46, s46, s45
        s_and_b32 s46, s46, 15
        {'s_lshl_b32 s48, s44, 6' if IL else ''}
        s_lshl_b32 s44, s44, 4
        s_add_u32 s46, s46, {'s48' if IL else 's44'}
        s_lshl_b32 s46, s46, 10
        s_add_u32 s44, s44, s45
        s_lshl_b32 m0, s44, 10
        s_and_b32 s47, s45, 3
        s_lshl_b32 s47, s47, 4
        v_xor_b32 v4, s47, v3
        s_waitcnt vmcnt({D-1})
        buffer_load_dwordx4 v4, s[36:39], s46 offen nt lds
        s_cmp_lt_u32 s50, 8
        s_cbranch_scc0 L_knobar
        s_barrier
        L_knobar:
        s_cmp_lt_u32 s50, {8*(D-2)}
        s_cbranch_scc0 L_kdyn
        s_add_u32 s50, s50, 8
        s_branch L_kloop
        L_kdyn:
        s_cmp_lt_u32 s50, {8*(D-1)}
        s_cbranch_scc0 L_kdyn2
        s_add_u32 s50, s50, 8
        s_mov_b64 exec, 1
        ds_add_rtn_u32 v7, v5, v6
        s_mov_b64 exec, -1
        s_branch L_kloop
        L_kdyn2:
        s_waitcnt lgkmcnt(0)
        v_readfirstlane_b32 s49, v7
        s_mov_b64 exec, 1
        ds_add_rtn_u32 v7, v5, v6
        s_cmp_lt_u32 s50, {8*D}
        s_cbranch_scc0 L_knosig
        ds_add_u32 v5, v6 offset:{F_WQ-F_T}
        L_knosig:
        s_mov_b64 exec, -1
        s_add_u32 s50, s49, {8*D}
        s_cmp_lt_u32 s50, 128
        s_cbranch_scc1 L_kloop
        s_mul_i32 s46, s34, 3
        s_add_u32 s46, s46, s51
        s_and_b32 s46, s46, 15
        s_lshl_b32 s46, s46, 10
        s_movk_i32 s48, 0x400
        s_movk_i32 s49, 0x3fff
        s_waitcnt lgkmcnt(0)
        """)
        self.stamp(2)
        VB = 64
        DV = self.opt("depthv", D)
        def vload(n):
            A(f"""
            buffer_load_dwordx4 v[{VB+4*n}:{VB+4*n+3}], v1, s[40:43], s46 offen nt
            s_add_u32 s46, s46, s48
            s_and_b32 s46, s46, s49
            """)
        for n in range(D):
            A(f"s_waitcnt vmcnt({D-1})")
            if n == D - 1:
                self.lds_signal(F_K, 4)
            vload(n)
        self.S_setup()
        cls = [("light", self.opt("pl", 3), self.opt("nl", 14)), ("mlp", self.opt("pm", 6), self.opt("nm", 12)), ("own", self.opt("po", 0), self.opt("no", 12))]
        A("""
        s_cmp_ge_u32 s96, 240
        s_cbranch_scc1 L_v_own
        s_cmp_lt_u32 s96, 144
        s_cbranch_scc1 L_v_mlp
        """)
        for name, p, lim in cls:
            A(f"L_v_{name}:")
            for n in range(D, 16):
                if p and n < lim:
                    A(f"s_waitcnt vmcnt({p-1})")
                vload(n)
            if name != "own":
                A("s_branch L_v_done")
        A("L_v_done:")
        if self.opt("wolast", 0):
            self.lds_signal(F_VI, 4)
        self.stamp(3)
        if self.opt('kvonly', 0) and self.opt('nopv', 0): A("s_waitcnt vmcnt(0)\ns_branch L_end")
        if not self.opt('kvonly', 0): self.lds_wait(F_P, 4, 4, sleep=1)
        self.stamp(4)
        A(f"""
        s_setprio 3
        ds_read_b128 v[16:19], v12
        ds_read_b128 v[20:23], v12 offset:16
        ds_read_b128 v[24:27], v12 offset:32
        ds_read_b128 v[28:31], v12 offset:48
        """)
        self.read_tag(4)
        A(f"""
        v_mov_b32 v41, s60
        v_mov_b32 v43, s61
        v_mov_b32 v45, s60
        v_mov_b32 v47, s61
        """)
        for n in range(16):
            a = 36 if n % 2 == 0 else 4
            A(f"""
            v_and_b32 v{a}, v{16+n}, v8
            v_and_b32 v{a+1}, v{16+n}, v9
            v_and_b32 v{a+2}, v{16+n}, v10
            v_and_b32 v{a+3}, v{16+n}, v11
            s_waitcnt vmcnt({15-n})
            s_nop 0
            v_mfma_f32_16x16x32_bf16 v[32:35], v[{a}:{a+3}], v[{VB+4*n}:{VB+4*n+3}], v[32:35]
            """)
        self.stamp(9)
        A(f"""
        v_mov_b32 v8, {F_O}
        v_mov_b32 v9, 1
        s_nop 5
        ds_write_b128 v15, v[32:35]
        s_mov_b64 exec, 1
        ds_add_rtn_u32 v9, v8, v9
        s_mov_b64 exec, -1
        ds_read_b32 v10, v8 offset:{F_F-F_O}
        ds_read_b128 v[36:39], v59
        """)
        for i in range(8):
            A(f"ds_read_b128 v[{64+4*i}:{67+4*i}], v14 offset:{1024*i}")
        A("""
        s_waitcnt lgkmcnt(9)
        v_readfirstlane_b32 s47, v9
        v_readfirstlane_b32 s46, v10
        s_nop 0
        s_cmp_lg_u32 s47, 7
        s_cbranch_scc1 L_S_notlast
        """)
        if self.opt("notail", 0): A("s_branch L_end")
        ld = "\n".join(f"global_load_dwordx4 v[{96+4*i}:{99+4*i}], v{48+i}, s[28:29] sc1" for i in range(3))
        A(ld)
        for i in range(0, 8, 2):
            A(f"""
            s_waitcnt lgkmcnt({6-i})
            v_pk_add_f32 v[{64+4*i}:{65+4*i}], v[{64+4*i}:{65+4*i}], v[{68+4*i}:{69+4*i}]
            v_pk_add_f32 v[{66+4*i}:{67+4*i}], v[{66+4*i}:{67+4*i}], v[{70+4*i}:{71+4*i}]
            """)
            if i in (2, 6):
                b = 64 + 4 * (i - 2)
                A(f"""
                v_pk_add_f32 v[{b}:{b+1}], v[{b}:{b+1}], v[{b+8}:{b+9}]
                v_pk_add_f32 v[{b+2}:{b+3}], v[{b+2}:{b+3}], v[{b+10}:{b+11}]
                """)
        A(f"""
        v_pk_add_f32 v[64:65], v[64:65], v[80:81]
        v_pk_add_f32 v[66:67], v[66:67], v[82:83]
        s_cmp_eq_u32 s46, {2 if self.opt('local', 1) else 99}
        v_cvt_pk_bf16_f32 v40, v64, v65
        v_cvt_pk_bf16_f32 v42, v66, v67
        s_cbranch_scc1 L_opub_local
        global_store_dwordx4 v13, v[40:43], s[28:29] sc1
        s_branch L_opub_done
        L_opub_local:
        global_store_dwordx4 v13, v[40:43], s[28:29]
        L_opub_done:
        """)
        self.stamp(5)
        A("s_cmp_lg_u32 s46, 0\ns_cbranch_scc1 L_fok")
        self.lds_wait(F_F, 1, 10)
        A(f"""
        ds_read_b128 v[36:39], v59
        s_waitcnt lgkmcnt(0)
        L_fok:
        v_mul_f32 v64, v64, v36
        v_mul_f32 v65, v65, v36
        v_mul_f32 v66, v66, v36
        v_mul_f32 v67, v67, v36
        v_mov_b32 v9, 1
        L_opoll:
        """)
        A(ld)
        self.guard(64)
        A("s_waitcnt vmcnt(3)")
        self.tagchk([96 + 4 * i for i in range(3)], 16, 17)
        A("s_cbranch_vccnz L_opoll")
        for i in range(3):
            A(f"""
            v_lshlrev_b32 v16, 16, v{96+4*i}
            v_and_b32 v17, 0xffff0000, v{96+4*i}
            v_lshlrev_b32 v18, 16, v{98+4*i}
            v_and_b32 v19, 0xffff0000, v{98+4*i}
            v_fmac_f32 v64, v16, v{37+i}
            v_fmac_f32 v65, v17, v{37+i}
            v_fmac_f32 v66, v18, v{37+i}
            v_fmac_f32 v67, v19, v{37+i}
            """)
        A(f"""
        v_cvt_pk_bf16_f32 v64, v64, v65
        v_cvt_pk_bf16_f32 v65, v66, v67
        ds_write_b64 v58, v[64:65]
        s_mov_b64 exec, 1
        ds_write_b32 v8, v9 offset:{F_OB-F_O}
        s_mov_b64 exec, -1
        """)
        self.stamp(12)
        A(f"""
        s_branch L_end
        L_S_notlast:
        s_cmp_lt_u32 s47, 4
        s_cbranch_scc0 L_end
        s_add_u32 s56, s47, 4
        s_mov_b32 s57, 0
        """)

    def S_setup(self):
        A = self.A
        A(f"""
        v_and_b32 v4, 1, v0
        v_cmp_eq_u32 vcc, 1, v4
        v_mov_b32 v5, 0xffff
        v_mov_b32 v6, 0xffff0000
        v_bfe_u32 v4, v0, 1, 2
        v_cndmask_b32 v5, v5, v6, vcc
        """)
        for i in range(4):
            A(f"v_cmp_eq_u32 vcc, {i}, v4\ns_nop 1\nv_cndmask_b32 v{8+i}, 0, v5, vcc")
        A(f"""
        v_bfe_u32 v4, v0, 3, 1
        v_lshlrev_b32 v4, 11, v4
        v_lshl_add_u32 v4, v2, 6, v4
        s_lshl_b32 s44, s34, 8
        s_add_u32 s44, s44, {PB}
        v_add_u32 v12, s44, v4
        v_mov_b32 v32, 0
        v_mov_b32 v33, 0
        v_mov_b32 v34, 0
        v_mov_b32 v35, 0
        v_and_b32 v5, 15, v0
        s_lshl_b32 s44, s35, 12
        s_add_u32 s44, s44, {W_O}
        s_lshl_b32 s45, s33, 10
        s_add_u32 s47, s45, s44
        v_add_u32 v13, s47, v1
        """)
        for i in range(3):
            A(f"""
            s_add_u32 s45, s45, 0x400
            s_and_b32 s45, s45, 0xfff
            s_add_u32 s47, s45, s44
            v_add_u32 v{48+i}, s47, v1
            """)
        A(f"""
        v_add_u32 v14, {OPART}, v1
        v_lshrrev_b32 v4, 5, v0
        v_lshlrev_b32 v59, 4, v4
        v_add_u32 v59, {FB}, v59
        v_lshlrev_b32 v4, 9, v4
        v_lshl_add_u32 v4, v5, 5, v4
        v_bfe_u32 v5, v0, 4, 1
        v_lshl_add_u32 v4, v5, 4, v4
        s_lshl_b32 s44, s34, 10
        s_add_u32 s44, s44, {OPART}
        v_add_u32 v15, s44, v4
        v_lshrrev_b32 v6, 3, v0
        v_lshlrev_b32 v6, 6, v6
        v_and_b32 v7, 3, v0
        v_lshl_add_u32 v6, v7, 4, v6
        v_bfe_u32 v7, v0, 2, 1
        v_lshl_add_u32 v6, v7, 3, v6
        v_add_u32 v58, {OB}, v6
        """)

    def gen_proj(self):
        A = self.A
        A("L_proj:")
        if self.opt("notail", 0):
            A("s_branch L_end")
        A(f"""
        s_setprio 0
        v_bfe_u32 v5, v0, 2, 2
        v_lshl_add_u32 v6, v2, 2, v5
        v_and_b32 v7, 3, v0
        v_lshlrev_b32 v7, 3, v7
        v_and_b32 v8, 7, v6
        v_xor_b32 v8, s56, v8
        v_lshl_add_u32 v8, v8, 5, v7
        v_lshl_add_u32 v50, v6, 8, v8
        v_bfe_u32 v8, v6, 1, 2
        v_xor_b32 v8, s3, v8
        v_and_b32 v8, 3, v8
        v_lshl_add_u32 v8, v8, 5, v7
        v_lshl_add_u32 v51, v6, 7, v8
        v_add_u32 v51, {WO8}, v51
        v_lshlrev_b32 v48, 4, v2
        v_add_u32 v48, {OB}, v48
        s_mul_i32 s44, s32, 36
        s_lshl_b32 s45, s33, 3
        s_add_u32 s45, s45, s56
        s_add_u32 s45, s45, s44
        s_lshl_b32 s45, s45, 11
        s_add_u32 s44, s44, s3
        s_add_u32 s44, s44, 32
        s_lshl_b32 s44, s44, 11
        v_mov_b32 v6, s45
        v_mov_b32 v7, s44
        v_cmp_eq_u32 s[54:55], 1, v2
        v_and_b32 v8, 1, v0
        v_cmp_eq_u32 vcc, 1, v8
        v_cndmask_b32 v6, v6, v7, s[54:55]
        v_mov_b32 v61, s60
        v_mov_b32 v63, s61
        v_cndmask_b32 v61, v61, v63, vcc
        s_lshl_b32 s44, s30, 7
        s_add_u32 s44, s44, {W_S}
        v_and_b32 v7, 15, v0
        v_lshl_add_u32 v6, v7, 3, v6
        v_add_u32 v54, s44, v6
        """)
        self.lds_wait(F_WO, 4, 4, sleep=1)
        self.stamp(6)
        for k in range(8):
            if k == 4: A("s_waitcnt lgkmcnt(4)")
            A(f"ds_read_b64_tr_b16 v[{64+4*k}:{65+4*k}], v50 offset:{8192*k}")
            A(f"ds_read_b64_tr_b16 v[{66+4*k}:{67+4*k}], v50 offset:{8192*k+4096}")
        A("s_cmp_eq_u32 s57, 0\ns_cbranch_scc1 L_no8a\ns_waitcnt lgkmcnt(0)")
        for k in range(8):
            if k == 4: A("s_waitcnt lgkmcnt(4)")
            A(f"ds_read_b64_tr_b16 v[{96+4*k}:{97+4*k}], v51 offset:{4096*k}")
            A(f"ds_read_b64_tr_b16 v[{98+4*k}:{99+4*k}], v51 offset:{4096*k+2048}")
        A("L_no8a:\ns_waitcnt lgkmcnt(0)")
        self.lds_wait(F_O, 8, 6, sleep=1)
        A(f"""
        v_mov_b32 v4, {F_OB}
        L_obwait:
        ds_read_b32 v5, v4
        ds_read_b128 v[16:19], v48
        ds_read_b128 v[20:23], v48 offset:64
        """)
        self.guard(1)
        A("""
        s_waitcnt lgkmcnt(2)
        v_readfirstlane_b32 s46, v5
        s_nop 0
        s_cmp_eq_u32 s46, 0
        s_cbranch_scc1 L_obwait
        """)
        for k in range(2, 8):
            A(f"ds_read_b128 v[{16+4*k}:{19+4*k}], v48 offset:{64*k}")
        A("s_cmp_eq_u32 s57, 0\ns_cbranch_scc0 L_proj2")
        for k in range(8):
            A(f"s_waitcnt lgkmcnt({min(6, 7-k)})")
            c = "0" if k == 0 else "v[8:11]"
            A(f"v_mfma_f32_16x16x32_bf16 v[8:11], v[{16+4*k}:{19+4*k}], v[{64+4*k}:{67+4*k}], {c}")
        A("""
        s_mov_b64 exec, 0xffff
        s_nop 6
        v_mov_b32 v60, v8
        global_store_dwordx2 v54, v[60:61], s[28:29] sc1
        s_mov_b64 exec, -1
        """)
        self.stamp(8)
        A("s_branch L_end\nL_proj2:")
        for k in range(8):
            A(f"s_waitcnt lgkmcnt({min(6, 7-k)})")
            c = "0" if k == 0 else "v[8:11]"
            c2 = "0" if k == 0 else "v[12:15]"
            A(f"v_mfma_f32_16x16x32_bf16 v[8:11], v[{16+4*k}:{19+4*k}], v[{64+4*k}:{67+4*k}], {c}")
            A(f"v_mfma_f32_16x16x32_bf16 v[12:15], v[{16+4*k}:{19+4*k}], v[{96+4*k}:{99+4*k}], {c2}")
        A("""
        s_mov_b32 exec_hi, 0
        s_nop 6
        v_cndmask_b32 v60, v8, v12, s[54:55]
        global_store_dwordx2 v54, v[60:61], s[28:29] sc1
        s_mov_b64 exec, -1
        """)
        self.stamp(8)
        A("s_branch L_end")

    def gen_LN(self):
        A = self.A
        A("L_ln:")
        A("""
        v_add_f32 v31, v22, v23
        v_add_f32 v32, v24, v25
        v_add_f32 v33, v26, v27
        v_add_f32 v31, v31, v32
        v_add_f32 v32, v28, v29
        v_add_f32 v33, v33, v30
        v_add_f32 v31, v31, v32
        v_add_f32 v31, v31, v33
        """)
        self.wave_sum(31, 44)
        A("v_mov_b32 v31, 0x3ae38e39\nv_mul_f32 v31, s44, v31\nv_mov_b32 v32, 0")
        for i in range(22, 31):
            A(f"v_sub_f32 v33, v{i}, v31\nv_fmac_f32 v32, v33, v33")
        self.wave_sum(32, 45)
        self.rb(31)
        A("v_mov_b32 v32, 0x3ae38e39\nv_mul_f32 v32, s45, v32")
        self.rb(32)
        A("v_add_f32 v32, 0x3727c5ac, v32")
        self.rb(32)
        A("v_sqrt_f32 v32, v32\ns_nop 0")
        self.rb(32)
        A("v_rcp_f32 v32, v32")
        for i in range(22, 31):
            A(f"v_sub_f32 v{i}, v{i}, v31")
        for i in range(22, 30, 2):
            self.rb2(i, i + 1)
        self.rb(30)
        for i in range(22, 31):
            A(f"v_mul_f32 v{i}, v{i}, v32")
        for i in range(22, 30, 2):
            self.rb2(i, i + 1)
        self.rb(30)
        A("s_setpc_b64 s[50:51]")

    def unpack9(self, src, s9):
        for i in range(4):
            self.A(f"v_lshlrev_b32 v{22+2*i}, 16, v{src+i}\nv_and_b32 v{23+2*i}, 0xffff0000, v{src+i}")
        self.A(f"v_lshlrev_b32 v30, 16, v{s9}")

    def gen_A(self):
        A = self.A
        A(f"""
        L_A:
        s_getreg_b32 s63, hwreg(HW_REG_XCC_ID, 0, 4)
        s_waitcnt lgkmcnt(0)
        s_add_u32 s60, s60, 0x7f4a7c15
        s_addc_u32 s61, s61, 0x9e3779b9
        s_lshl_b32 s45, s30, 6
        s_lshl_b32 s46, s31, 2
        s_add_u32 s46, s46, s45
        s_add_u32 s45, s45, {W_ID}
        s_add_u32 s48, s28, s45
        s_addc_u32 s49, s29, 0
        s_xor_b32 s47, s61, s63
        s_cmp_lg_u32 s3, 1
        s_cbranch_scc1 L_A_noid
        v_mov_b32 v4, s46
        v_mov_b32 v5, s47
        s_mov_b64 exec, 1
        global_store_dword v4, v5, s[28:29] offset:{W_ID}
        s_mov_b64 exec, -1
        L_A_noid:
        s_add_u32 s44, s44, {XN}
        v_add_u32 v11, s44, v1
        v_add_u32 v12, s44, v14
        s_cmp_lg_u32 s3, 1
        s_cbranch_scc1 L_A_w0
        s_waitcnt vmcnt(1)
        s_branch L_A_w1
        L_A_w0:
        s_waitcnt vmcnt(0)
        L_A_w1:
        """)
        self.stamp(1)
        self.unpack9(16, 20)
        A("s_call_b64 s[50:51], L_ln")
        A(f"""
        v_cvt_pk_bf16_f32 v16, v22, v23
        v_cvt_pk_bf16_f32 v17, v24, v25
        v_cvt_pk_bf16_f32 v18, v26, v27
        v_cvt_pk_bf16_f32 v19, v28, v29
        v_lshrrev_b32 v20, 16, v30
        ds_write_b128 v11, v[16:19]
        ds_write_b16 v12, v20 offset:1024
        s_cmp_lg_u32 s3, 0
        s_cbranch_scc1 L_A_notag
        v_mov_b32 v11, {TAG}
        v_mov_b32 v12, s60
        v_mov_b32 v13, s61
        ds_write_b64 v11, v[12:13]
        L_A_notag:
        """)
        self.lds_signal(F_X, 4)
        self.stamp(2)
        if self.opt("wopre", 0):
            A(f"""
            s_cmp_eq_u32 s3, 0
            s_cbranch_scc1 L_A_q
            s_lshl_b32 s44, s30, 4
            s_add_u32 s44, s44, s31
            s_mul_i32 s44, s44, 18432
            s_mul_i32 s45, s3, 6144
            s_add_u32 s44, s44, s45
            s_sub_u32 s44, s44, 6144
            v_add_u32 v3, s44, v1
            v_add_u32 v4, 0xc00, v3
            """)
            pol = self.opt("wppol", "")
            for k in range(3):
                A(f"global_load_dwordx4 v[60:63], v3, s[12:13] offset:{1024*k} {pol}\nglobal_load_dwordx4 v[60:63], v4, s[12:13] offset:{1024*k} {pol}")
            A("s_branch L_A_poll\nL_A_q:")
        A("""
        s_cmp_lg_u32 s3, 1
        s_cbranch_scc1 L_A_noidchk
        v_lshlrev_b32 v4, 2, v0
        s_mov_b32 s45, 0
        s_mov_b64 exec, 0xffff
        L_idpoll:
        global_load_dword v5, v4, s[48:49] sc1
        s_add_u32 s45, s45, 1
        s_waitcnt vmcnt(0)
        v_cmp_ne_u32 vcc, s47, v5
        s_mov_b32 s44, IDOK
        s_cbranch_vccz L_iddone
        s_mov_b32 s44, 1
        s_cmp_lt_u32 s45, IDN
        s_cbranch_scc1 L_idpoll
        L_iddone:
        s_mov_b64 exec, -1
        """.replace("IDOK", "2" if self.opt("qlocal", 1) else "1").replace("IDN", str(self.opt("idn", 4))))
        A(f"""
        v_mov_b32 v4, {F_L}
        v_mov_b32 v5, s44
        ds_write_b32 v4, v5
        L_A_noidchk:
        """)
        A("s_cmp_lg_u32 s3, 0\ns_cbranch_scc1 L_A_poll")
        A(f"""
        v_bfe_u32 v3, v0, 2, 2
        v_lshl_add_u32 v4, v2, 2, v3
        v_bfe_u32 v5, v4, 1, 2
        v_lshlrev_b32 v5, 5, v5
        v_lshl_add_u32 v5, v4, 7, v5
        v_and_b32 v6, 3, v0
        v_lshl_add_u32 v5, v6, 3, v5
        v_add_u32 v8, {WQ}, v5
        v_xor_b32 v9, 32, v8
        v_xor_b32 v10, 64, v8
        v_xor_b32 v11, 0x60, v8
        v_mul_u32_u24 v12, 1152, v3
        v_lshl_add_u32 v12, v2, 3, v12
        s_mul_i32 s44, s32, 288
        s_add_u32 s44, s44, {XN}
        v_add_u32 v12, s44, v12
        s_lshl_b32 s44, s30, 15
        s_lshl_b32 s45, s32, 11
        s_add_u32 s44, s44, s45
        s_lshl_b32 s45, s33, 9
        s_add_u32 s44, s44, s45
        s_add_u32 s44, s44, {W_Q}
        v_lshlrev_b32 v13, 13, v2
        v_and_b32 v4, 15, v0
        v_lshl_add_u32 v13, v4, 4, v13
        v_add_u32 v13, s44, v13
        v_mov_b32 v53, s60
        v_mov_b32 v55, s61
        """)
        self.lds_wait(F_X, 4, 4)
        for k in range(4):
            A(f"ds_read2_b64 v[{16+4*k}:{19+4*k}], v12 offset0:{8*k} offset1:{8*k+4}")
        A("ds_read_b64 v[32:33], v12 offset:256\nv_mov_b32 v5, s60\nv_mov_b32 v7, s61")
        self.lds_wait(F_WQ, 8, 14)
        self.stamp(3)
        reads = []
        for ct in range(4):
            base = 56 + 18 * ct
            for k in range(4):
                reads.append(f"ds_read_b64_tr_b16 v[{base+4*k}:{base+4*k+1}], v{8+ct} offset:{4096*k}")
                reads.append(f"ds_read_b64_tr_b16 v[{base+4*k+2}:{base+4*k+3}], v{8+ct} offset:{4096*k+2048}")
            reads.append(f"ds_read_b64_tr_b16 v[{base+16}:{base+17}], v{8+ct} offset:16384")
        pos = 0
        for ct in range(4):
            upto = min(36, 9 * (ct + 1) + 5)
            while pos < upto:
                A(reads[pos]); pos += 1
            base = 56 + 18 * ct
            d = f"v[{36+4*ct}:{39+4*ct}]"
            A(f"s_waitcnt lgkmcnt({5 if ct < 3 else 0})")
            A(f"v_mfma_f32_16x16x16_bf16 {d}, v[32:33], v[{base+16}:{base+17}], 0")
            A("s_nop 5")
            for k in range(4):
                A(f"v_mfma_f32_16x16x32_bf16 {d}, v[{16+4*k}:{19+4*k}], v[{base+4*k}:{base+4*k+3}], {d}")
        self.lds_wait(F_L, 1, 14)
        A(f"""
        v_mov_b32 v4, v36
        v_mov_b32 v6, v40
        v_mov_b32 v52, v44
        v_mov_b32 v54, v48
        s_cmp_eq_u32 s46, 2
        s_cbranch_scc1 L_qpub_local
        global_store_dwordx4 v13, v[4:7], s[28:29] sc1
        global_store_dwordx4 v13, v[52:55], s[28:29] offset:256 sc1
        s_branch L_qpub_done
        L_qpub_local:
        global_store_dwordx4 v13, v[4:7], s[28:29]
        global_store_dwordx4 v13, v[52:55], s[28:29] offset:256
        L_qpub_done:
        """)
        self.stamp(4)
        self.lds_signal(F_QP, 8)
        A("L_A_poll:")
        A(f"""
        s_lshl_b32 s44, s30, 15
        s_lshl_b32 s45, s32, 13
        s_add_u32 s44, s44, s45
        s_lshl_b32 s45, s3, 9
        s_add_u32 s44, s44, s45
        s_add_u32 s44, s44, {W_Q}
        s_add_u32 s48, s28, s44
        s_addc_u32 s49, s29, 0
        v_lshrrev_b32 v20, 5, v0
        v_and_b32 v3, 31, v0
        v_lshlrev_b32 v21, 12, v20
        v_lshl_add_u32 v21, v3, 4, v21
        v_add_u32 v21, s44, v21
        s_lshl_b32 s44, s3, 7
        s_add_u32 s44, s44, {QS}
        v_and_b32 v3, 15, v0
        v_lshlrev_b32 v22, 1, v3
        v_lshl_add_u32 v22, v20, 5, v22
        v_bfe_u32 v23, v0, 4, 1
        v_lshl_add_u32 v22, v23, 6, v22
        v_add_u32 v22, s44, v22
        v_bfe_u32 v24, v0, 3, 1
        v_lshlrev_b32 v24, 8, v24
        v_lshl_add_u32 v24, v2, 4, v24
        v_add_u32 v24, {QS}, v24
        v_and_b32 v25, 3, v0
        v_bfe_u32 v26, v0, 2, 2
        v_lshl_add_u32 v25, v25, 2, v26
        v_lshlrev_b32 v25, 8, v25
        v_xor_b32 v26, v2, v3
        v_lshl_add_u32 v25, v26, 4, v25
        s_lshl_b32 s44, s3, 15
        v_add_u32 v28, s44, v25
        v_xor_b32 v29, 64, v28
        v_xor_b32 v30, 0x80, v28
        v_xor_b32 v31, 0xc0, v28
        """)
        self.lds_wait(F_QP, 1, 8, sleep=2)
        A(f"""
        ds_read_b32 v9, v8 offset:{F_L-F_QP}
        s_waitcnt lgkmcnt(0)
        v_readfirstlane_b32 s46, v9
        s_nop 0
        s_cmp_eq_u32 s46, 2
        s_cbranch_scc1 L_qpoll
        {'s_branch L_qpoll' if self.opt('allvec', 0) else ''}
        """)
        if self.opt("qtk", 0):
            self.lds_wait(F_T, self.opt("qtk", 0), 8, sleep=2)
            A("s_branch L_qpoll")
        A(f"""
        {'s_branch L_qskip' if self.opt('noq', 0) else ''}
        L_qsp:
        s_load_dwordx2 s[52:53], s[48:49], 0x1f8 glc
        s_load_dwordx2 s[54:55], s[48:49], 0x9f8 glc
        s_load_dwordx2 s[56:57], s[48:49], 0x11f8 glc
        s_load_dwordx2 s[58:59], s[48:49], 0x19f8 glc
        """)
        self.guard(16)
        A(f"""
        s_sleep {self.opt('qsleep', 2)}
        s_waitcnt lgkmcnt(0)
        s_xor_b32 s53, s53, s61
        s_xor_b32 s55, s55, s61
        s_xor_b32 s57, s57, s61
        s_xor_b32 s59, s59, s61
        s_or_b32 s53, s53, s55
        s_or_b32 s57, s57, s59
        s_or_b32 s53, s53, s57
        s_cbranch_scc1 L_qsp
        {'s_branch L_qskip' if self.opt('qx', 0) == 1 else ''}
        {'s_mov_b32 exec_lo, 0xffff0000' if self.opt('qhalf', 0) else ''}
        {'s_mov_b32 exec_hi, 0xffff0000' if self.opt('qhalf', 0) else ''}
        L_qpoll:
        global_load_dwordx4 v[8:11], v21, s[28:29] sc1
        global_load_dwordx4 v[12:15], v21, s[28:29] offset:2048 sc1
        """)
        self.guard(64)
        A("s_waitcnt vmcnt(0)")
        self.tagchk([8, 12], 16, 17)
        if self.opt("qx", 0) == 2: A("s_branch L_qskip")
        A("""
        s_cbranch_vccnz L_qpoll
        L_qskip:
        s_mov_b64 exec, -1
        v_add_f32 v8, v8, v12
        v_add_f32 v10, v10, v14
        s_nop 1
        v_permlane32_swap_b32 v8, v10
        v_add_f32 v8, v8, v10
        v_cvt_pk_bf16_f32 v8, v8, v8
        ds_write_b16 v22, v8
        """)
        self.lds_signal(F_Q, 6)
        self.stamp(5)
        self.lds_wait(F_Q, 4, 6)
        for t in range(4):
            A(f"ds_read_b128 v[{8+4*t}:{11+4*t}], v24 offset:{64*t}")
        self.lds_wait(F_K, 8, 6, sleep=1)
        self.stamp(6)

        def kread(tau):
            for t in range(4):
                r = 64 + ((tau % 4) * 4 + t) * 4
                A(f"ds_read_b128 v[{r}:{r+3}], v{28+t} offset:{4096*tau}")
        for tau in range(2):
            kread(tau)
        for tau in range(8):
            if tau + 2 < 8:
                kread(tau + 2)
            out = min(2, 7 - tau) * 4
            for t in range(4):
                r = 64 + ((tau % 4) * 4 + t) * 4
                A(f"s_waitcnt lgkmcnt({out + 3 - t})")
                c = "0" if t == 0 else f"v[{32+4*tau}:{35+4*tau}]"
                A(f"v_mfma_f32_16x16x32_bf16 v[{32+4*tau}:{35+4*tau}], v[{r}:{r+3}], v[{8+4*t}:{11+4*t}], {c}")
        A("s_mov_b32 s44, 0x02020202")
        for tau in range(1, 8):
            A(f"""
            s_mov_b32 exec_lo, s44
            s_mov_b32 exec_hi, s44
            v_mov_b32 v32, v{32+4*tau}
            v_mov_b32 v33, v{33+4*tau}
            v_mov_b32 v34, v{34+4*tau}
            v_mov_b32 v35, v{35+4*tau}
            s_lshl_b32 s44, s44, 1
            """)
        A("s_mov_b64 exec, -1\nv_mov_b32 v20, 0x3db504f3")
        for i in (32, 34):
            self.rb2(i, i + 1)
            A(f"v_mul_f32 v{i}, v{i}, v20\nv_mul_f32 v{i+1}, v{i+1}, v20")
            self.rb2(i, i + 1)
        mx = "v_max_f32_dpp v3, v3, v3"
        A(f"""
        v_max_f32 v3, v32, v33
        v_max3_f32 v3, v3, v34, v35
        v_bfe_u32 v5, v0, 3, 1
        v_lshlrev_b32 v5, 4, v5
        {mx} quad_perm:[1,0,3,2] {DPPF}
        v_add_u32 v5, {MA}, v5
        s_lshl_b32 s44, s3, 2
        {mx} quad_perm:[2,3,0,1] {DPPF}
        v_add_u32 v6, s44, v5
        s_nop 0
        {mx} row_half_mirror {DPPF}
        """)
        self.xlane45(3, 4, "max")
        A("ds_write_b32 v6, v3")
        self.lds_signal(F_M, 8)
        A(f"""
        v_bfe_u32 v7, v0, 3, 1
        v_lshlrev_b32 v7, 11, v7
        v_lshl_add_u32 v7, v2, 6, v7
        v_bfe_u32 v8, v0, 2, 1
        v_lshl_add_u32 v7, v8, 8, v7
        v_and_b32 v8, 3, v0
        v_lshl_add_u32 v7, v8, 4, v7
        s_lshl_b32 s44, s3, 9
        s_add_u32 s44, s44, {PB}
        v_add_u32 v14, s44, v7
        """)
        self.lds_wait(F_M, 4, 8)
        sm = "v_add_f32_dpp v12, v12, v12"
        A(f"""
        ds_read_b128 v[8:11], v5
        v_mov_b32 v20, 0x3fb8aa3b
        s_waitcnt lgkmcnt(0)
        v_max_f32 v3, v8, v9
        v_max3_f32 v3, v3, v10, v11
        v_mul_f32 v4, v3, v20
        v_fma_f32 v32, v32, v20, -v4
        v_fma_f32 v33, v33, v20, -v4
        v_fma_f32 v34, v34, v20, -v4
        v_fma_f32 v35, v35, v20, -v4
        v_exp_f32 v32, v32
        v_exp_f32 v33, v33
        v_exp_f32 v34, v34
        v_exp_f32 v35, v35
        v_add_f32 v12, v32, v33
        v_cvt_pk_bf16_f32 v36, v32, v32
        v_add_f32 v13, v34, v35
        v_cvt_pk_bf16_f32 v37, v33, v33
        v_add_f32 v12, v12, v13
        v_cvt_pk_bf16_f32 v38, v34, v34
        v_cvt_pk_bf16_f32 v39, v35, v35
        {sm} quad_perm:[1,0,3,2] {DPPF}
        ds_write_b128 v14, v[36:39]
        s_nop 0
        {sm} quad_perm:[2,3,0,1] {DPPF}
        s_nop 1
        {sm} row_half_mirror {DPPF}
        """)
        self.xlane45(12, 13, "add")
        A(f"ds_write_b32 v6, v12 offset:{LA-MA}")
        self.lds_signal(F_P, 6, rtn=True)
        A(f"""
        s_getreg_b32 s63, hwreg(HW_REG_XCC_ID, 0, 4)
        s_waitcnt lgkmcnt(0)
        v_readfirstlane_b32 s46, v7
        s_nop 0
        s_cmp_lg_u32 s46, 3
        s_cbranch_scc1 L_A_noml
        ds_read_b128 v[12:15], v5 offset:{LA-MA}
        s_xor_b32 s45, s61, s63
        v_mov_b32 v8, v3
        v_mov_b32 v9, s60
        v_mov_b32 v11, s45
        s_lshl_b32 s44, s35, 7
        s_lshl_b32 s45, s33, 4
        s_add_u32 s44, s44, s45
        s_add_u32 s44, s44, {W_ML}
        v_bfe_u32 v5, v0, 3, 1
        v_lshlrev_b32 v5, 6, v5
        v_add_u32 v5, s44, v5
        s_mov_b64 exec, 0x101
        s_waitcnt lgkmcnt(0)
        v_add_f32 v12, v12, v13
        v_add_f32 v14, v14, v15
        v_add_f32 v10, v12, v14
        global_store_dwordx4 v5, v[8:11], s[28:29] sc1
        s_mov_b64 exec, -1
        L_A_noml:
        """)
        self.stamp(9)
        A(f"""
        s_lshl_b32 s44, s30, 8
        s_lshl_b32 s45, s3, 6
        s_add_u32 s44, s44, s45
        s_mul_i32 s44, s44, 1152
        s_add_u32 s40, s12, s44
        s_addc_u32 s41, s13, 0
        s_mov_b32 s42, {64*1152}
        v_lshrrev_b32 v20, 3, v0
        v_bfe_u32 v3, v0, 4, 2
        v_lshlrev_b32 v3, 1, v3
        v_and_b32 v4, 7, v0
        v_xor_b32 v3, v3, v4
        v_lshlrev_b32 v3, 4, v3
        v_mul_u32_u24 v20, 1152, v20
        v_add_u32 v20, v20, v3
        v_add_u32 v20, 0x400, v20
        v_and_b32 v3, 15, v0
        v_lshlrev_b32 v3, 4, v3
        v_lshlrev_b32 v4, 5, v2
        v_xor_b32 v3, v3, v4
        v_xor_b32 v4, 0x80, v3
        v_mul_u32_u24 v21, 1152, v2
        s_lshl_b32 s45, s33, 8
        v_add3_u32 v22, v21, v4, s45
        v_add3_u32 v21, v21, v3, s45
        v_add_u32 v22, {4*1152}, v22
        s_mov_b32 s56, s3
        s_cmp_eq_u32 s33, s32
        s_cselect_b32 s57, 1, 0
        """)
        self.lds_wait(F_P, 4, 6)
        self.stamp(10)
        wp = self.opt("wo", "")
        WPC = f"s_waitcnt vmcnt({self.opt('wopace', 0)-2})" if self.opt('wopace', 0) else ""
        if self.opt("woprio", -1) >= 0: A(f"s_setprio {self.opt('woprio', -1)}")
        EMU = """s_mov_b32 s44, 0x3f2f1f70
        s_mov_b32 s45, 0x6fff548f
        s_lshl_b32 s46, s31, 2
        s_lshr_b64 s[44:45], s[44:45], s46
        s_and_b32 s44, s44, 15
        s_cmp_gt_u32 s44, 8
        s_cbranch_scc1 L_wo8done
        s_lshl_b32 s44, s44, 7
        v_subrev_u32 v20, 0x400, v20
        v_add_u32 v20, s44, v20
        s_branch L_wo8start"""
        A(f"""
        {EMU if self.opt('emu9', 0) else ''}
        {'s_branch L_wo8done' if self.opt('nowo', 0) else ''}
        s_lshl_b32 m0, s3, 14
        s_mov_b32 s44, 0
        L_woloop:
        {WPC}
        buffer_load_dwordx4 v21, s[40:43], s44 offen {wp} lds
        s_add_u32 m0, m0, 0x400
        s_nop 0
        buffer_load_dwordx4 v22, s[40:43], s44 offen {wp} lds
        s_add_u32 m0, m0, 0x400
        s_add_u32 s44, s44, {8*1152}
        s_cmp_lt_u32 s44, {64*1152}
        s_cbranch_scc1 L_woloop
        s_cmp_eq_u32 s57, 0
        s_cbranch_scc1 L_wo8done
        L_wo8start:
        s_lshl_b32 s44, s3, 13
        s_add_u32 m0, s44, {WO8}
        s_mov_b32 s44, 0
        L_wo8:
        {WPC}
        buffer_load_dwordx4 v20, s[40:43], s44 offen {wp} lds
        s_add_u32 m0, m0, 0x400
        s_add_u32 s44, s44, {8*1152}
        s_cmp_lt_u32 s44, {64*1152}
        s_cbranch_scc1 L_wo8
        L_wo8done:
        s_cmp_lg_u32 s3, 0
        s_cbranch_scc1 L_A_wowait
        """)
        if self.opt("noml", 0): A("s_branch L_A_wowait")
        A(f"""
        s_lshl_b32 s44, s35, 12
        s_lshl_b32 s45, s33, 10
        s_add_u32 s44, s44, s45
        s_add_u32 s44, s44, {W_O}
        v_add_u32 v3, s44, v1
        global_load_dwordx4 v[24:27], v3, s[28:29] sc1
        s_lshl_b32 s45, s35, 7
        s_add_u32 s45, s45, {W_ML}
        s_add_u32 s48, s28, s45
        s_addc_u32 s49, s29, 0
        v_subrev_u32 v15, s33, v2
        v_and_b32 v15, 3, v15
        v_lshlrev_b32 v15, 2, v15
        v_add_u32 v15, {FB}, v15
        s_mov_b32 s58, 0
        L_mlpoll:
        s_load_dwordx16 s[4:19], s[48:49], 0 glc
        """)
        self.guard(16)
        A("s_sleep 2\ns_waitcnt lgkmcnt(0)\ns_mov_b32 s44, 0\ns_mov_b32 s47, 0")
        for i in range(4):
            A(f"""
            s_xor_b32 s45, s{4+4*i+1}, s60
            s_or_b32 s44, s44, s45
            s_xor_b32 s45, s{4+4*i+3}, s61
            s_xor_b32 s46, s45, s63
            s_or_b32 s47, s47, s46
            s_lshr_b32 s45, s45, 4
            s_or_b32 s44, s44, s45
            """)
        A(f"""
        s_cbranch_scc1 L_mlpoll
        v_mov_b32 v8, s4
        v_mov_b32 v10, s6
        v_mov_b32 v9, s8
        v_mov_b32 v11, s10
        v_cmp_eq_u32 vcc, 1, v2
        v_mov_b32 v12, s12
        v_mov_b32 v13, s14
        v_cndmask_b32 v8, v8, v9, vcc
        v_cndmask_b32 v10, v10, v11, vcc
        v_cmp_eq_u32 vcc, 2, v2
        v_mov_b32 v9, s16
        v_mov_b32 v11, s18
        v_cndmask_b32 v8, v8, v12, vcc
        v_cndmask_b32 v10, v10, v13, vcc
        v_cmp_eq_u32 vcc, 3, v2
        s_nop 1
        v_cndmask_b32 v8, v8, v9, vcc
        v_cndmask_b32 v10, v10, v11, vcc
        v_mov_b32 v12, v8
        """)
        self.xlane45(12, 13, "max")
        A("""
        v_sub_f32 v12, v8, v12
        v_mul_f32 v12, 0x3fb8aa3b, v12
        v_exp_f32 v12, v12
        s_nop 0
        v_mul_f32 v13, v12, v10
        """)
        self.xlane45(13, 14, "add")
        A(f"""
        v_rcp_f32 v13, v13
        s_add_u32 s48, s48, 64
        s_addc_u32 s49, s49, 0
        v_mul_f32 v12, v12, v13
        ds_write_b32 v15, v12
        v_add_u32 v15, 16, v15
        s_add_u32 s58, s58, 1
        s_cmp_lt_u32 s58, 2
        s_cbranch_scc1 L_mlpoll
        s_cmp_eq_u32 s47, 0
        s_cselect_b32 s44, 2, 1
        v_mov_b32 v8, {F_F}
        v_mov_b32 v9, s44
        ds_write_b32 v8, v9
        """)
        self.stamp(11)
        A("L_A_wowait:\ns_waitcnt vmcnt(0)")
        self.lds_signal(F_WO, 6)
        A("s_branch L_proj")

    def gen_M(self):
        A = self.A
        A(f"""
        L_M2:
        s_mul_i32 s58, s96, 1821
        s_lshr_b32 s58, s58, 16
        s_mul_i32 s59, s58, 36
        s_sub_u32 s59, s96, s59
        s_lshl_b32 s44, s34, 6
        v_add_u32 v13, s44, v0
        v_lshlrev_b32 v14, 2, v13
        v_lshlrev_b32 v13, 4, v13
        v_add_u32 v15, 0x1000, v13
        v_add_u32 v14, 0x2000, v14
        v_and_b32 v92, 7, v0
        v_lshrrev_b32 v3, 5, v0
        v_lshl_add_u32 v92, v92, 1, v3
        s_mul_i32 s44, s58, 1152
        s_lshl_b32 s45, s59, 5
        s_add_u32 s44, s44, s45
        v_lshlrev_b32 v93, 1, v92
        v_add_u32 v93, s44, v93
        v_mov_b32 v95, 0
        """)
        if not self.opt("wearly", 0): self.lds_wait(F_X, 4, 4, sleep=1)
        if self.opt("wlate", 0): self.lds_wait(F_T, self.opt("wlate", 0), 4, sleep=2)
        for (p, r) in (("s[16:17]", 96), ("s[18:19]", 106), ("s[20:21]", 116)):
            A(f"""
            global_load_dwordx4 v[{r}:{r+3}], v13, {p}
            global_load_dwordx4 v[{r+4}:{r+7}], v15, {p}
            global_load_dword v{r+8}, v14, {p}
            """)
        A("global_load_ushort v94, v93, s[4:5]\nglobal_load_ushort v95, v95, s[22:23]")
        if self.opt("wearly", 0): self.lds_wait(F_X, 4, 4, sleep=1)
        self.read_tag(4)
        A(f"""
        s_mul_i32 s44, s58, 1152
        s_add_u32 s44, s44, {XN}
        v_lshlrev_b32 v14, 1, v0
        v_add_u32 v11, s44, v1
        v_add_u32 v12, s44, v14
        ds_read_b128 v[16:19], v11
        ds_read_u16 v20, v12 offset:1024
        s_waitcnt lgkmcnt(0)
        """)
        self.unpack9(16, 20)
        A("s_call_b64 s[50:51], L_ln")
        A(f"""
        v_lshlrev_b32 v11, 5, v0
        v_add_u32 v11, {HB}, v11
        v_lshlrev_b32 v12, 2, v0
        v_add_u32 v12, {HB}, v12
        ds_write_b128 v11, v[22:25]
        ds_write_b128 v11, v[26:29] offset:16
        ds_write_b32 v12, v30 offset:2048
        s_lshl_b32 s44, s59, 6
        s_add_u32 s44, s44, {HB}
        v_mov_b32 v15, s44
        s_waitcnt vmcnt(0)
        """)
        self.stamp(1)
        for (r, dst) in ((96, 32), (106, 50), (116, 68)):
            for i in range(9):
                A(f"v_lshlrev_b32 v{dst+2*i}, 16, v{r+i}\nv_and_b32 v{dst+2*i+1}, 0xffff0000, v{r+i}")
        K0 = -2.0 * math.sqrt(2.0 / math.pi) * math.log2(math.e)
        K1 = K0 * 0.044715
        A(f"""
        v_mov_b32 v30, {f2u(K0):#x}
        v_mov_b32 v31, {f2u(K1):#x}
        s_lshl_b32 s44, s34, 4
        s_add_u32 s44, s44, {GP}
        v_lshlrev_b32 v14, 2, v2
        v_add_u32 v14, s44, v14
        s_mov_b32 s47, 0
        s_mov_b32 s48, 0x00010001
        s_mov_b32 s49, 0x00010001
        s_waitcnt lgkmcnt(0)
        ds_read_b32 v4, v15
        L_mlp:
        v_mov_b32 v6, 0
        v_mov_b32 v7, 0
        s_waitcnt lgkmcnt(0)
        """)
        for grp in range(3):
            ks = [3 * grp + j for j in range(3)]
            U = lambda j: f"v[{8+2*j}:{9+2*j}]"
            T = lambda j: f"v[{16+2*j}:{17+2*j}]"
            P = lambda base, k: f"v[{base+2*k}:{base+2*k+1}]"
            for j, k in enumerate(ks): A(f"v_pk_fma_f32 {U(j)}, {P(32,k)}, v[4:5], {P(50,k)} op_sel_hi:[1,0,1]")
            for j, k in enumerate(ks): A(f"v_pk_mul_f32 {T(j)}, {U(j)}, {U(j)}")
            for j, k in enumerate(ks): A(f"v_pk_fma_f32 {T(j)}, {T(j)}, v[30:31], v[30:31] op_sel:[0,1,0] op_sel_hi:[1,1,0]")
            for j, k in enumerate(ks): A(f"v_pk_mul_f32 {T(j)}, {T(j)}, {U(j)}")
            for j, k in enumerate(ks): A(f"v_exp_f32 v{16+2*j}, v{16+2*j}\nv_exp_f32 v{17+2*j}, v{17+2*j}")
            for j, k in enumerate(ks): A(f"v_pk_mul_f32 {U(j)}, {U(j)}, {P(68,k)}")
            for j, k in enumerate(ks): A(f"v_pk_add_f32 {T(j)}, {T(j)}, 1.0 op_sel_hi:[1,0]")
            for j, k in enumerate(ks): A(f"v_rcp_f32 v{16+2*j}, v{16+2*j}\nv_rcp_f32 v{17+2*j}, v{17+2*j}")
            A("v_add_u32 v15, 4, v15\nds_read_b32 v4, v15" if grp == 2 else "s_nop 0")
            for j, k in enumerate(ks): A(f"v_pk_fma_f32 v[6:7], {U(j)}, {T(j)}, v[6:7]")
        ins = "v_add_f32_dpp v6, v6, v6"
        A(f"""
        v_add_f32 v6, v6, v7
        s_nop 1
        {ins} quad_perm:[1,0,3,2] {DPPF}
        s_nop 1
        {ins} quad_perm:[2,3,0,1] {DPPF}
        s_nop 1
        {ins} row_half_mirror {DPPF}
        s_nop 1
        {ins} row_mirror {DPPF}
        s_mov_b64 exec, s[48:49]
        ds_write_b32 v14, v6
        s_mov_b64 exec, -1
        v_add_u32 v14, 64, v14
        s_add_u32 s47, s47, 1
        s_cmp_lt_u32 s47, 16
        s_cbranch_scc1 L_mlp
        s_waitcnt lgkmcnt(0)
        """)
        self.lds_signal(F_G, 8)
        self.stamp(2)
        A(f"""
        s_cmp_lg_u32 s34, 0
        s_cbranch_scc1 L_end
        s_setprio 3
        v_lshlrev_b32 v6, 6, v92
        v_add_u32 v6, {GP}, v6
        s_lshl_b32 s44, s96, 11
        s_add_u32 s44, s44, {W_S}
        v_add_u32 v7, s44, v1
        global_load_dwordx4 v[32:35], v7, s[28:29] sc1
        global_load_dwordx4 v[36:39], v7, s[28:29] offset:1024 sc1
        """)
        self.lds_wait(F_G, 4, 8, sleep=1)
        A("""
        ds_read_b128 v[8:11], v6
        ds_read_b128 v[12:15], v6 offset:16
        ds_read_b128 v[16:19], v6 offset:32
        ds_read_b128 v[20:23], v6 offset:48
        s_waitcnt lgkmcnt(0)
        """)
        for i in range(9, 24):
            A(f"v_add_f32 v8, v8, v{i}")
        self.rb(8)
        A("v_lshlrev_b32 v4, 16, v94\nv_lshlrev_b32 v5, 16, v95\nv_add_f32 v8, v8, v5")
        self.rb(8)
        A("""
        v_mul_f32 v9, 0xbfb8aa3b, v8
        v_exp_f32 v9, v9
        s_nop 0
        v_add_f32 v9, 1.0, v9
        v_rcp_f32 v9, v9
        s_nop 0
        v_mul_f32 v5, v8, v9
        """)
        self.rb(5)
        A(f"""
        v_bfe_u32 v8, v0, 3, 2
        v_cmp_eq_u32 s[52:53], 0, v8
        s_waitcnt vmcnt(0)
        """)
        self.stamp(3)
        if self.opt("notail", 0) or self.opt("cut", 0):
            A("s_branch L_end")
        self.lds_wait(F_OB, 1, 8, sleep=1)
        self.stamp(4)
        if self.opt("mask2", 1):
            self.poll2m(7, 1024, 32, 16, "L_spoll", sleep=self.opt("ssleep", 0), pol=self.opt("spol", "sc1").replace("_", " "))
            A("v_add_f32 v10, v32, v36\nv_add_f32 v11, v34, v38")
        else:
            self.poll2(7, 1024, 32, 40, 16, "L_spoll",
                   lambda b: A(f"v_add_f32 v10, v{b}, v{b+4}\nv_add_f32 v11, v{b+2}, v{b+6}"))
        A(f"""
        s_nop 1
        v_permlane32_swap_b32 v10, v11
        v_add_f32 v10, v10, v11
        v_mov_b32 v11, v10
        s_nop 1
        v_permlane16_swap_b32 v10, v11
        v_add_f32 v10, v10, v11
        s_nop 1
        v_add_f32_dpp v10, v10, v10 row_ror:8 {DPPF}
        """)
        self.rb(10)
        A("v_mul_f32 v10, v10, v5")
        self.rb(10)
        A(f"""
        v_add_f32 v10, v10, v4
        v_cvt_pk_bf16_f32 v10, v10, v10
        s_mov_b64 exec, s[52:53]
        global_store_short v93, v10, s[24:25] {self.opt('opol', '').replace('_', ' ')}
        s_mov_b64 exec, -1
        """)
        self.stamp(5)
        A(f"""
        s_cmp_lg_u32 s96, 0
        s_cbranch_scc1 L_end
        v_mov_b32 v8, 0
        v_mov_b32 v10, s60
        v_mov_b32 v11, s61
        s_mov_b64 exec, 1
        global_store_dwordx2 v8, v[10:11], s[28:29] offset:{W_EPOCH}
        s_mov_b64 exec, -1
        """)
        if self.opt("amp", 0):
            A(f"""
            s_memrealtime s[66:67]
            s_waitcnt lgkmcnt(0)
            s_sub_u32 s68, s66, s64
            s_mul_i32 s68, s68, {self.opt("amp", 0)}
            L_amp:
            s_memrealtime s[70:71]
            s_waitcnt lgkmcnt(0)
            s_sub_u32 s69, s70, s66
            s_cmp_lt_u32 s69, s68
            s_cbranch_scc1 L_amp
            """)


if __name__ == "__main__":
    import argparse
    ap = argparse.ArgumentParser()
    ap.add_argument("--out", default="recurrent_scan__sliding_block_cached__mixer_token_mlp__decode.s")
    ap.add_argument("--stamps", action="store_true")
    ap.add_argument("--opt", action="append", default=[])
    a = ap.parse_args()
    opts = dict(x.split("=", 1) for x in a.opt)
    open(a.out, "w").write(G(a.stamps, opts).gen())
```
